```python
import torch

def _softmax(x, axis=-1):
    return torch.softmax(x, dim=axis)
def _gelu(x):
    return torch.nn.functional.gelu(x, approximate="tanh")
def _silu(x):
    return torch.nn.functional.silu(x)
def _sigmoid(x):
    return torch.sigmoid(x)
def _layernorm(x, axis=-1, eps=1e-5):
    m = x.mean(dim=axis, keepdim=True)
    v = x.var(dim=axis, keepdim=True, unbiased=False)
    return (x - m) / torch.sqrt(v + eps)
def _scatter_add(tgt, idx, src, axis=0):
    return tgt.clone().index_add_(axis, idx, src)
def _segment_sum(src, seg, n):
    out = torch.zeros((n,) + src.shape[1:], dtype=src.dtype)
    return out.index_add_(0, seg, src)
def _pad(x, pw):
    flat = tuple(v for pair in reversed(pw) for v in pair)
    return torch.nn.functional.pad(x, flat)

kernel_name = 'recurrent_scan__gqa_block_cached__glu_gated_swiglu__prompt'

def setup_inputs():

    _w = (lambda a: (lambda t: t.to(torch.bfloat16) if t.is_floating_point() else t)(torch.as_tensor(a)))
    def _A_setup():
        B, Sq, D = 1, 2048, 640
        Hq, Hkv, Sk, Dh = 32, 32, 2048, 128
        assert Hq % Hkv == 0, (Hq, Hkv)
        return {
            "x": _w((lambda *s: torch.randn(*s, dtype=torch.bfloat16) * 0.05)(B, Sq, D)),
            "k_cache": _w((lambda *s: torch.randn(*s, dtype=torch.bfloat16) * 1.6)(B, Hkv, Sk, Dh)),
            "v_cache": _w((lambda *s: torch.randn(*s, dtype=torch.bfloat16) * 1.6)(B, Hkv, Sk, Dh)),
            "wq": _w((lambda *s: torch.randn(*s, dtype=torch.bfloat16) * 1.6)(D, Hq * Dh) * (D ** -0.5)),
            "wo": _w((lambda *s: torch.randn(*s, dtype=torch.bfloat16) * 1.6)(Hq * Dh, D) * ((Hq * Dh) ** -0.5)),
        }
    _A_in = _A_setup()

    def _B_setup():
        B, S, D, F = 1, 2048, 640, 1728
        return {
            "x": _w((lambda *s: torch.randn(*s, dtype=torch.bfloat16) * 0.05)(B, S, D)),
            "w1": _w((lambda *s: torch.randn(*s, dtype=torch.bfloat16) * 0.2)(D, F) * (2.0 / D) ** 0.5),
            "w3": _w((lambda *s: torch.randn(*s, dtype=torch.bfloat16) * 0.2)(D, F) * (2.0 / D) ** 0.5),
            "w2": _w((lambda *s: torch.randn(*s, dtype=torch.bfloat16) * 0.2)(F, D) * (2.0 / F) ** 0.5),
        }
    _B_in = _B_setup()

    return {
        "A_x": _A_in["x"],
        "A_k_cache": _A_in["k_cache"],
        "A_v_cache": _A_in["v_cache"],
        "A_wq": _A_in["wq"],
        "A_wo": _A_in["wo"],
        "B_x": _B_in["x"],
        "B_w1": _B_in["w1"],
        "B_w3": _B_in["w3"],
        "B_w2": _B_in["w2"],
    }

def reference(A_x, A_k_cache, A_v_cache, A_wq, A_wo, B_x, B_w1, B_w3, B_w2):
    def _A_ref(x, k_cache, v_cache, wq, wo):
        B, Sq, D = x.shape
        Hq, Dh = 32, 128
        Hkv = k_cache.shape[1]
        rep = Hq // Hkv
        q = (lambda x, *d: x.permute(*d))((x @ wq).reshape(B, Sq, Hq, Dh), 0, 2, 1, 3)
        k = (lambda x, n, axis: torch.repeat_interleave(x, n, dim=axis))(k_cache, rep, axis=1)
        v = (lambda x, n, axis: torch.repeat_interleave(x, n, dim=axis))(v_cache, rep, axis=1)
        scores = torch.einsum("bhqd,bhkd->bhqk", q, k) * (Dh ** -0.5)
        p = _softmax(scores, axis=-1)
        o = torch.einsum("bhqk,bhkd->bhqd", p, v)
        return (lambda x, *d: x.permute(*d))(o, 0, 2, 1, 3).reshape(B, Sq, Hq * Dh) @ wo

    def _B_ref(x, w1, w3, w2):
        gate = torch.einsum("bsd,df->bsf", x, w1)
        up = torch.einsum("bsd,df->bsf", x, w3)
        h = _silu(gate) * up
        out = torch.einsum("bsf,fd->bsd", h, w2)
        return out

    x = A_x
    xn = _layernorm(x, axis=-1)
    s = _A_ref(xn, A_k_cache, A_v_cache, A_wq, A_wo)
    g = _silu(_B_ref(xn, B_w1, B_w3, B_w2))
    return x + s * g
```

```python
import re

def R(kind, lo, n=1):
    return f"{kind}{lo}" if n == 1 else f"{kind}[{lo}:{lo+n-1}]"
def v(lo, n=1): return R("v", lo, n)
def a(lo, n=1): return R("a", lo, n)
def s(lo, n=1): return R("s", lo, n)

_reg = re.compile(r"^(-|\|)?(abs\()?([vas])(?:(\d+)|\[(\d+):(\d+)\])\)?\|?$")
def regs_of(op):
    op = op.strip()
    if op in ("vcc", "vcc_lo", "vcc_hi"): return {("x", "vcc")}
    if op == "m0": return {("x", "m0")}
    if op in ("exec", "exec_lo", "exec_hi"): return {("x", "exec")}
    m = _reg.match(op)
    if not m: return set()
    k = m.group(3)
    if m.group(4) is not None: return {(k, int(m.group(4)))}
    return {(k, i) for i in range(int(m.group(5)), int(m.group(6)) + 1)}

TRANS = ("v_exp_f32", "v_log_f32", "v_rcp_f32", "v_rsq_f32", "v_sqrt_f32", "v_sin_f32", "v_cos_f32")

class Ins:
    __slots__ = ("text", "op", "ops", "rd", "wr", "kind", "tag", "srcC", "srcAB")
    def __init__(self, text, tag=None):
        self.text = text; self.tag = tag
        t = text.split(";")[0].strip()
        parts = t.split(None, 1)
        self.op = parts[0]
        rest = parts[1] if len(parts) > 1 else ""
        ops = [o.strip() for o in rest.split(",")] if rest else []
        mods = ""
        if ops:
            sp = ops[-1].split(None, 1)
            ops[-1] = sp[0]; mods = sp[1] if len(sp) > 1 else ""
        self.ops = ops
        op = self.op
        rd, wr = set(), set()
        self.srcC = set(); self.srcAB = set()
        allr = [regs_of(o) for o in ops]
        U = lambda l: set().union(*l) if l else set()
        if op.endswith(":") or op.startswith("."):
            self.kind = "dir"
        elif op.startswith("v_mfma"):
            self.kind = "mfma"; wr = allr[0]; rd = U(allr[1:]); self.srcC = allr[3]; self.srcAB = allr[1] | allr[2]
        elif op.startswith("ds_read"):
            self.kind = "dsr"; wr = allr[0]; rd = U(allr[1:])
        elif op.startswith("ds_write") or op.startswith("ds_or_b32") or op.startswith("ds_add_u32"):
            self.kind = "dsw"; rd = U(allr)
        elif op.startswith("buffer_load") or op.startswith("global_load"):
            if " lds" in " " + mods or "_lds_" in op:
                self.kind = "dma"; rd = U(allr) | {("x", "m0")}
            else:
                self.kind = "vld"; wr = allr[0]; rd = U(allr[1:])
        elif op.startswith("buffer_store") or op.startswith("global_store"):
            self.kind = "vst"; rd = U(allr)
        elif op.startswith("global_atomic") or op.startswith("buffer_atomic"):
            if "sc0" in mods and op.startswith("global"):
                self.kind = "vld"; wr = allr[0]; rd = U(allr[1:])
            elif "sc0" in mods:
                self.kind = "vld"; wr = allr[0]; rd = U(allr)
            else:
                self.kind = "vst"; rd = U(allr)
        elif op in ("buffer_inv", "buffer_wbl2"):
            self.kind = "vst"
        elif op.startswith("s_load") or op.startswith("s_memtime") or op.startswith("s_memrealtime") or op.startswith("s_buffer_load"):
            self.kind = "smem"; wr = allr[0]; rd = U(allr[1:])
        elif op == "s_waitcnt": self.kind = "wait"
        elif op == "s_nop": self.kind = "nop"
        elif op in ("s_barrier", "s_endpgm", "s_setprio", "s_sleep", "s_branch") or op.startswith("s_cbranch"):
            self.kind = "ctl"
        elif op.startswith("s_cmp") or op.startswith("s_bitcmp"):
            self.kind = "salu"; rd = U(allr)
        elif op.startswith("s_"):
            self.kind = "salu"; wr = allr[0]; rd = U(allr[1:])
            if "saveexec" in op: wr = wr | {("x", "exec")}
            if op in ("s_addk_i32", "s_mulk_i32"): rd |= allr[0]
        elif op.startswith("v_"):
            self.kind = "valu"
            if op.startswith("v_permlane") and "swap" in op:
                wr = allr[0] | allr[1]; rd = set(wr)
            elif op.startswith("v_cmp"):
                wr = allr[0]; rd = U(allr[1:])
            elif op.startswith("v_add_co") or op.startswith("v_addc_co") or op.startswith("v_sub_co"):
                wr = allr[0] | allr[1]; rd = U(allr[2:])
            else:
                wr = allr[0]; rd = U(allr[1:])
                if op.startswith("v_fmac") or op.startswith("v_writelane") or "_dpp" in op and "bound_ctrl" not in mods: rd |= allr[0]
        else:
            raise ValueError("unknown instr: " + text)
        self.rd, self.wr = rd, wr

    @property
    def is_trans(self): return self.op.replace("_e32", "").replace("_e64", "") in TRANS

class Sec:
    def __init__(self, name): self.name = name; self.ins = []
    def I(self, text, tag=None):
        for t in text.split("\n"):
            t = t.strip()
            if t: self.ins.append(Ins(t, tag))
    def C(self, text): self.ins.append(Cmt(text))
    def text(self): return "\n".join(("" if (i.kind == "dir") else "    ") + i.text for i in self.ins)

class Cmt:
    kind = "dir"; op = ";"; tag = None
    def __init__(self, t): self.text = "; " + t; self.rd = set(); self.wr = set()

def parse_wait(text):
    vm = re.search(r"vmcnt\((\d+)\)", text); lg = re.search(r"lgkmcnt\((\d+)\)", text)
    return (int(vm.group(1)) if vm else None, int(lg.group(1)) if lg else None)

def check_trace(secs, label=""):
    tr = [i for sc in secs for i in sc.ins if i.kind != "dir"]
    errs = []
    vmq = []
    lgq = []
    hist = []
    pos = 0
    lastw = {}
    mfw = {}
    mfc = {}
    salw = {}
    stw = {}
    def E(i, msg): errs.append(f"[{label}] #{n} '{i.text}': {msg}")
    for n, i in enumerate(tr):
        k = i.kind
        if k == "wait":
            vm, lg = parse_wait(i.text)
            if vm is not None:
                while len(vmq) > vm: vmq.pop(0)
            if lg is not None:
                if any(x[0] == "smem" for x in lgq) and lg > 0: E(i, "counted lgkm wait with SMEM outstanding")
                while len(lgq) > lg: lgq.pop(0)
            pos += 1; continue
        if k == "nop":
            pos += int(i.ops[0], 0) + 1; continue
        touched = i.rd | i.wr
        for dst in vmq:
            if dst & touched: E(i, f"touches reg with pending vmem load {sorted(dst & touched)[:2]}")
        for kk, dst in lgq:
            if dst & touched: E(i, f"touches reg with pending lds/smem load {sorted(dst & touched)[:2]}")
        def dist(tbl, r): return pos - tbl[r][0] - 1 if r in tbl else 99
        if k == "mfma":
            for r in i.rd:
                if dist(lastw, r) < 2: E(i, f"VALU write -> MFMA read {r} dist {dist(lastw, r)}")
            for r in i.srcAB:
                if dist(mfw, r) < 8: E(i, f"MFMA D -> MFMA A/B {r} dist {dist(mfw, r)}")
            for r in i.srcC:
                if r in mfw and mfw[r][1].wr != i.srcC and dist(mfw, r) < 6: E(i, f"MFMA D -> overlapping C {r}")
            for r in i.wr:
                if r in mfw and r not in i.srcC and dist(mfw, r) < 6: E(i, f"MFMA D WAW close {r} dist {dist(mfw, r)}")
            if dist(lastw, ("x", "exec")) < 4: E(i, "exec write -> mfma")
        if k in ("valu", "dsr", "dsw", "vld", "vst", "dma"):
            for r in touched:
                if dist(mfw, r) < 8: E(i, f"MFMA D -> use {r} dist {dist(mfw, r)}")
        if k == "valu":
            for r in i.wr:
                if r in mfc and pos - mfc[r] - 1 < 3: E(i, f"MFMA srcC WAR {r}")
                if r in stw and pos - stw[r] - 1 < 2: E(i, f"wide store data WAR {r}")
            for r in i.rd:
                if r in lastw:
                    p, w = lastw[r]; d = pos - p - 1
                    if w.is_trans and not i.is_trans and d < 1: E(i, f"trans -> valu {r}")
                    if i.op.startswith("v_permlane") and d < 2: E(i, f"valu -> permlane {r} dist {d}")
                    if "_dpp" in i.op and r[0] == "v" and d < 2: E(i, f"valu -> dpp {r} dist {d}")
                    if (i.op.startswith("v_readfirstlane") or i.op.startswith("v_readlane")) and r[0] == "v" and d < 1: E(i, f"valu -> readlane {r}")
                    if r[0] in ("s", "x") and d < 2: E(i, f"valu sgpr write -> valu read {r} dist {d}")
        if k in ("vld", "dsr"):
            for r in i.wr:
                if r in stw and pos - stw[r] - 1 < 1: E(i, f"wide store data WAR (load) {r}")
        if k in ("vld", "vst", "dma"):
            for r in i.rd:
                if r[0] == "s" and dist(lastw, r) < 5: E(i, f"valu sgpr write -> vmem read {r}")
        if k == "dma":
            if ("x", "m0") in salw and pos - salw[("x", "m0")] - 1 < 1: E(i, "m0 write -> dma")
        if k == "valu":
            for r in i.wr: lastw[r] = (pos, i); mfw.pop(r, None)
        if k == "salu":
            for r in i.wr: salw[r] = pos; lastw.pop(r, None)
        if k == "mfma":
            for r in i.wr: mfw[r] = (pos, i); lastw.pop(r, None)
            for r in i.srcC: mfc[r] = pos
        if k in ("vld", "vst", "dma"):
            vmq.append(set(i.wr))
            if len(vmq) > 63: E(i, "more than 63 vmem outstanding")
            if k == "vst" and ("x4" in i.op or "x3" in i.op):
                data = regs_of(i.ops[0]) if i.op.startswith("buffer") else regs_of(i.ops[1])
                for r in data: stw[r] = pos
        if k in ("dsr", "dsw"):
            lgq.append(("ds", set(i.wr)))
        if k == "smem": lgq.append(("smem", set(i.wr)))
        pos += 1
    return errs

def est_cycles(sec):
    t = 0; mfree = 0; vfree = 0; nm = 0; over = 0; prev = None; lastm = None
    for i in sec.ins:
        k = i.kind
        if k == "dir": continue
        if k == "mfma":
            st = max(t, mfree, vfree)
            if lastm is not None and st - lastm > 16: over += 1
            lastm = st
            t = st + 4; vfree = st + 8; mfree = st + 16; nm += 1
        elif k == "valu":
            st = max(t, vfree); c = 8 if i.is_trans else 4
            t = st + c; vfree = t
        elif k in ("dsr", "dsw", "vld", "vst", "dma"):
            st = max(t, vfree)
            if prev == "valu": st += 8
            t = st + (16 if k == "dsw" else 4); vfree = t
        elif k == "nop": t += 4 * (int(i.ops[0], 0) + 1)
        else: t += 4
        prev = k
    return max(t, mfree), nm, over

class Gaps:
    def __init__(self):
        self.m = []; self.sh = []; self.mem = []; self.va = []
    def add(self, text):
        self.m.append(text); self.sh.append([]); self.mem.append([]); self.va.append([])
        return len(self.m) - 1
    def cost(self, k):
        c = 0
        for t in self.mem[k]: c += 4
        for t in self.va[k]:
            c += 8 if t[0].split()[0] in TRANS else 4
        c += 4 * max(0, len(self.sh[k]) - 1)
        return c
    def S(self, k, text, tag=None): self.sh[k].append((text, tag))
    def M(self, k, text, tag=None): self.mem[k].append((text, tag))
    def V(self, k, text, tag=None): self.va[k].append((text, tag))
    def spread(self, ops, k0, k1):
        cst = lambda t: 8 if t.split()[0] in TRANS else 4
        base = [self.cost(k) for k in range(k0, k1)]
        tot = sum(base) + sum(cst(t) for t in ops)
        level = max(8.0, tot / (k1 - k0))
        qi = 0; cum = 0.0; used = 0
        for idx, k in enumerate(range(k0, k1)):
            cum += level; used += base[idx]
            while qi < len(ops) and (used + cst(ops[qi]) <= cum + 1e-6 or k == k1 - 1):
                self.va[k].append((ops[qi], None)); used += cst(ops[qi]); qi += 1
            if level == 8.0: used = max(used, cum) if False else used
        assert qi == len(ops)
    def emit(self, sec):
        for k in range(len(self.m)):
            sec.I(self.m[k])
            for t, tg in self.sh[k] + self.mem[k] + self.va[k]:
                sec.I(t, tg)

def resolve_waits(secs):
    vm = []; lg = []
    for sc in secs:
        for i in sc.ins:
            if i.kind in ("vld", "vst", "dma"): vm.append(i.tag)
            elif i.kind in ("dsr", "dsw"): lg.append(i.tag)
            elif i.kind == "wait" and "@" in i.text:
                out = []
                for tok in i.text.split()[1:]:
                    if tok.startswith("@"):
                        c, tag = tok[1:].split(":")
                        q = vm if c == "vm" else lg
                        idx = [n for n, t in enumerate(q) if t == tag]
                        assert idx, f"no op tagged {tag} before wait in {sc.name}"
                        cnt = len(q) - 1 - idx[-1]
                        mx = 63 if c == "vm" else 15
                        assert cnt <= mx or True
                        out.append(f"{'vmcnt' if c == 'vm' else 'lgkmcnt'}({min(cnt, mx)})")
                    else: out.append(tok)
                i.text = "s_waitcnt " + " ".join(out)

def kdesc(name, vgpr, accum, sgpr=96):
    return f""".p2align 6
.amdhsa_kernel {name}
  .amdhsa_next_free_vgpr {vgpr}
  .amdhsa_next_free_sgpr {sgpr}
  .amdhsa_accum_offset {accum}
  .amdhsa_group_segment_fixed_size 0
  .amdhsa_kernarg_size 96
  .amdhsa_user_sgpr_count 2
  .amdhsa_user_sgpr_kernarg_segment_ptr 1
  .amdhsa_system_sgpr_workgroup_id_x 1
  .amdhsa_float_denorm_mode_32 3
.end_amdhsa_kernel
"""
```

```python
import sys, math, struct
from asmlib import *

NAME = "recurrent_scan__gqa_block_cached__glu_gated_swiglu__prompt"
OPT = dict(stamp=0)
for x in sys.argv[2:]:
    k, val = x.split("="); OPT[k] = int(val)

def f32(x): return "0x%08x" % struct.unpack("<I", struct.pack("<f", x))[0]

XN_OFF = 0x0000000
H_OFF  = 0x0300000
O_OFF  = 0x0A00000
WT_OFF = 0x1A00000
ST_OFF = 0x2400000
H_RT = 54 * 4096; O_RT = 128 * 4096; WT_CT = 182 * 5120
MF = "v_mfma_f32_16x16x32_bf16"

def srd(sec, d, base, off_lo=None, size=None, lit_off=0):
    if lit_off:
        sec.I(f"s_add_u32 {s(d)}, {s(base)}, {hex(lit_off)}")
        sec.I(f"s_addc_u32 {s(d+1)}, {s(base+1)}, 0")
        b = d
    else: b = base
    if off_lo is not None:
        sec.I(f"s_add_u32 {s(d)}, {s(b)}, {s(off_lo)}")
        sec.I(f"s_addc_u32 {s(d+1)}, {s(b+1)}, 0")
    elif not lit_off:
        sec.I(f"s_mov_b32 {s(d)}, {s(base)}")
        sec.I(f"s_mov_b32 {s(d+1)}, {s(base+1)}")
    if isinstance(size, int): sec.I(f"s_mov_b32 {s(d+2)}, {hex(size)}")
    else: sec.I(size)
    sec.I(f"s_mov_b32 {s(d+3)}, 0x20000")

def gen_ln():
    sc = Sec("ln"); I = sc.I
    I("ln_kernel:")
    I("s_cmp_ge_u32 s2, 256")
    I("s_cbranch_scc1 L_ln_end")
    I("s_load_dwordx2 s[4:5], s[0:1], 0")
    I("s_load_dwordx2 s[6:7], s[0:1], 88")
    I("v_lshrrev_b32 v1, 4, v0")
    I("s_lshl_b32 s3, s2, 3")
    I("v_add_u32 v1, s3, v1")
    I("v_and_b32 v2, 15, v0             ; p")
    I("v_mul_u32_u24 v3, 1280, v1")
    I("v_lshl_add_u32 v3, v2, 4, v3")
    I("s_waitcnt lgkmcnt(0)")
    srd(sc, 8, 4, size=2048*1280)
    srd(sc, 12, 6, size=2048*1280, lit_off=XN_OFF)
    for i in range(5):
        I(f"buffer_load_dwordx4 {v(8+4*i,4)}, v3, s[8:11], 0 offen offset:{256*i}")
    I("v_lshrrev_b32 v4, 6, v1")
    I("v_mul_u32_u24 v4, 81920, v4")
    I("v_bfe_u32 v5, v1, 4, 2")
    I("v_lshl_add_u32 v4, v5, 12, v4")
    I("v_and_b32 v5, 15, v1")
    I("v_lshl_add_u32 v4, v5, 4, v4")
    I("v_lshl_add_u32 v4, v2, 8, v4     ; p*256 == (p>>2)*1024 + (p&3)*256")
    I("s_mov_b32 s16, 0xffff0000")
    for i in range(5):
        I(f"s_waitcnt vmcnt({4-i})")
        for r in range(4):
            d = 4*i + r
            I(f"v_lshlrev_b32 {v(32+2*d)}, 16, {v(8+d)}")
            I(f"v_and_b32 {v(33+2*d)}, s16, {v(8+d)}")
    I("v_pk_add_f32 v[6:7], v[32:33], v[34:35]")
    for d in range(2, 20): I(f"v_pk_add_f32 v[6:7], v[6:7], {v(32+2*d,2)}")
    I("v_add_f32 v6, v6, v7")
    def rowsum(r):
        for sh in (8, 4, 2, 1):
            I("s_nop 1")
            I(f"v_add_f32_dpp {v(r)}, {v(r)}, {v(r)} row_ror:{sh} row_mask:0xf bank_mask:0xf")
    rowsum(6)
    I(f"v_mul_f32 v6, {f32(-1.0/640)}, v6     ; -mean")
    I("v_mov_b32 v7, v6")
    for d in range(20): I(f"v_pk_add_f32 {v(32+2*d,2)}, {v(32+2*d,2)}, v[6:7]")
    I("v_pk_mul_f32 v[6:7], v[32:33], v[32:33]")
    for d in range(1, 20): I(f"v_pk_fma_f32 v[6:7], {v(32+2*d,2)}, {v(32+2*d,2)}, v[6:7]")
    I("v_add_f32 v6, v6, v7")
    rowsum(6)
    I(f"v_mov_b32 v7, {f32(1e-5)}")
    I(f"v_fmac_f32 v7, {f32(1.0/640)}, v6")
    I("v_rsq_f32 v6, v7")
    I("s_nop 0")
    I("v_mov_b32 v7, v6")
    for d in range(20): I(f"v_pk_mul_f32 {v(32+2*d,2)}, {v(32+2*d,2)}, v[6:7]")
    for i in range(5):
        for r in range(4):
            d = 4*i + r
            I(f"v_cvt_pk_bf16_f32 {v(8+d)}, {v(32+2*d)}, {v(33+2*d)}")
        I(f"s_mov_b32 s17, {16384*i}")
        I(f"buffer_store_dwordx4 {v(8+4*i,4)}, v4, s[12:15], s17 offen")
    I("L_ln_end:")
    I("s_endpgm")
    return [sc], [[sc]], kdesc("ln_kernel", 72, 72, 32)

sK, sV, sWQ, sW1, sW3, sXN, sH, sO = 8, 12, 16, 20, 24, 28, 32, 36
sSRC, sWT = 20, 24
sW1024 = 40; sT = 41; sKOFF = 42; sCNT = 43; sHH = 44; sC4096 = 45
sRETRY = 48; sTW = 49; sU = 50; sQS = 51; sNL2E = 52; sM0K = 53; sM0V = 54; sT2 = 55
sPWO, sPW2 = 56, 58
sSTP = 60
P0, P1, QF, SS, NEGM = 0, 64, 128, 192, 208
vKA, vVA, vDK, vDV = 224, 228, 236, 237
vLN16 = 238
vXOFF, vDQ, vDF, vAA = 239, 240, 241, 242
vOOFF, vHOFF = 246, 247
vTMP = 248
OA, LA, KF, VF, ONES = 0, 128, 144, 160, 176
XF = 128
RING = 98304
KBUF = [0, 32768]; VBASE = 65536; VBUF = [0, 32768]
FLAGS = 131072

def stamp(sec, idx):
    if not OPT["stamp"]: return
    sec.I(f"s_memtime s[64:65]")
    sec.I(f"s_waitcnt lgkmcnt(0)")
    sec.I(f"v_writelane_b32 v255, s64, {idx}")
    sec.I(f"s_memrealtime s[64:65]")
    sec.I(f"s_waitcnt lgkmcnt(0)")
    sec.I(f"v_writelane_b32 v255, s64, {idx+32}")

def a_setup():
    sc = Sec("a_setup"); I = sc.I
    I("attn_kernel:")
    I("s_cmp_ge_u32 s2, 256")
    I("s_cbranch_scc1 L_a_end")
    I("s_load_dwordx4 s[68:71], s[0:1], 8      ; K, V")
    I("s_load_dwordx4 s[72:75], s[0:1], 24")
    I("s_load_dwordx4 s[76:79], s[0:1], 48     ; w1, w3")
    I("s_load_dwordx2 s[80:81], s[0:1], 64     ; w2")
    I("s_load_dwordx2 s[82:83], s[0:1], 88     ; ws")
    if OPT["stamp"]: I("v_mov_b32 v255, 0")
    I("v_lshrrev_b32 v1, 6, v0")
    I("v_and_b32 v2, 63, v0                   ; lane")
    I(f"v_readfirstlane_b32 s4, v1")
    I("s_and_b32 s5, s2, 7")
    I("s_lshl_b32 s5, s5, 2")
    I("s_bfe_u32 s6, s2, 0x20003")
    I("s_add_u32 s5, s5, s6                   ; head")
    I("s_lshr_b32 s6, s2, 5                   ; q tile")
    I(f"s_and_b32 {s(sHH)}, s2, 31")
    I(f"s_lshl_b32 {s(sW1024)}, s4, 10")
    I(f"v_lshlrev_b32 v3, 4, v2                ; 16*lane")
    I(f"v_mul_u32_u24 {v(vXOFF)}, 81920, v1")
    I(f"v_add_u32 {v(vXOFF)}, {v(vXOFF)}, v3")
    I("v_lshrrev_b32 v4, 3, v0                ; 8w + l>>3")
    I("v_bfe_u32 v5, v0, 4, 1")
    I("v_bfe_u32 v6, v0, 6, 1")
    I("v_lshl_add_u32 v5, v6, 1, v5")
    I("v_lshlrev_b32 v5, 1, v5")
    I("v_and_b32 v6, 7, v0")
    I("v_xor_b32 v5, v5, v6")
    I("v_lshlrev_b32 v5, 4, v5")
    I(f"v_lshl_add_u32 {v(vDQ)}, v4, 13, v5")
    I(f"v_mul_u32_u24 {v(vDF)}, 3456, v4")
    I(f"v_add_u32 {v(vDF)}, {v(vDF)}, v5")
    I("s_waitcnt lgkmcnt(0)")
    I("s_mul_i32 s7, s6, 4*81920")
    srd(sc, sXN, 82, off_lo=7, size=4*81920, lit_off=XN_OFF)
    I("s_lshl_b32 s7, s5, 8")
    srd(sc, sWQ, 72, off_lo=7, size=f"s_sub_u32 {s(sWQ+2)}, {640*8192}, s7")
    I(f"s_min_u32 s7, {s(sHH)}, 26")
    I(f"s_lshl_b32 s7, s7, 7")
    srd(sc, sW1, 76, off_lo=7, size=f"s_sub_u32 {s(sW1+2)}, {640*3456}, s7")
    srd(sc, sW3, 78, off_lo=7, size=f"s_sub_u32 {s(sW3+2)}, {640*3456}, s7")
    I(f"s_mov_b32 {s(sC4096)}, 4096")
    I(f"s_mov_b32 {s(sC4096+1)}, 8192")
    I(f"s_mov_b32 {s(sC4096+2)}, 12288")
    stamp(sc, 0)
    return sc

def a_setup2(sc):
    I = sc.I
    I("s_lshl_b32 s7, s5, 19")
    srd(sc, sK, 68, off_lo=7, size=524288)
    srd(sc, sV, 70, off_lo=7, size=524288)
    I(f"s_mul_i32 s7, s6, {4*H_RT}")
    I(f"s_min_u32 s3, {s(sHH)}, 26")
    I(f"s_lshl_b32 s3, s3, 13")
    I("s_add_u32 s7, s7, s3")
    srd(sc, sH, 82, off_lo=7, size=3*H_RT + 8192, lit_off=H_OFF)
    I(f"s_lshl_b32 s7, s6, 21                  ; qt*4*O_RT")
    I("s_lshl_b32 s3, s5, 14")
    I("s_add_u32 s7, s7, s3")
    srd(sc, sO, 82, off_lo=7, size=3*O_RT + 16384, lit_off=O_OFF)
    I(f"s_mov_b32 {s(sPWO)}, s74\ns_mov_b32 {s(sPWO+1)}, s75\ns_mov_b32 {s(sPW2)}, s80\ns_mov_b32 {s(sPW2+1)}, s81")
    I(f"s_mul_i32 {s(sTW)}, s6, 5")
    I(f"s_add_u32 {s(sTW)}, {s(sTW)}, {s(sHH)}")
    I(f"s_sub_u32 {s(sTW)}, {s(sTW)}, 27")
    I(f"s_mov_b32 {s(sRETRY)}, 0")
    I(f"s_mov_b32 {s(sQS)}, {f32(math.log2(math.e)/math.sqrt(128.0))}")
    I(f"s_mov_b32 {s(sNL2E)}, {f32(-math.log2(math.e))}")
    I(f"v_mul_u32_u24 {v(vHOFF)}, {H_RT}, v1")
    I(f"v_add_u32 {v(vHOFF)}, {v(vHOFF)}, v3")
    I(f"v_lshl_add_u32 {v(vOOFF)}, v1, 19, v3")
    I("v_lshrrev_b32 v4, 4, v2                ; g")
    I("v_bfe_u32 v5, v2, 2, 2                 ; r'")
    I("v_and_b32 v6, 3, v2                    ; c")
    I("v_and_b32 v7, 15, v2                   ; q / kv")
    I("v_lshl_add_u32 v8, v4, 3, v5")
    I("v_lshlrev_b32 v8, 7, v8")
    I("v_lshl_add_u32 v8, v6, 3, v8")
    I(f"v_add_u32 v8, {RING}, v8")
    I("v_bfe_u32 v9, v2, 3, 2")
    for nb in range(4):
        I(f"v_xor_b32 v10, {nb}, v9")
        I(f"v_lshl_add_u32 {v(vAA+nb)}, v10, 5, v8")
    I("v_bfe_u32 v9, v2, 4, 1")
    I("v_bfe_u32 v10, v2, 5, 1")
    I("v_lshl_add_u32 v9, v9, 1, v10          ; pg")
    I("v_xor_b32 v9, v9, v7")
    I("v_lshlrev_b32 v8, 8, v7")
    for t in range(4):
        I(f"v_xor_b32 v10, {4*t}, v9")
        I(f"v_lshl_add_u32 {v(vKA+t)}, v10, 4, v8")
    I("v_lshrrev_b32 v9, 2, v2                ; 4g+r'")
    I("v_lshlrev_b32 v8, 8, v9")
    I("v_lshl_add_u32 v8, v6, 3, v8")
    I(f"v_add_u32 v8, {VBASE}, v8")
    I("v_and_b32 v9, 7, v9")
    for e in range(8):
        I(f"v_xor_b32 v10, {e}, v9")
        I(f"v_lshl_add_u32 {v(vVA+e)}, v10, 5, v8")
    I("v_lshrrev_b32 v9, 4, v0                ; 4w + l>>4")
    I("v_lshlrev_b32 v8, 8, v9")
    I("v_xor_b32 v10, v7, v9")
    I(f"v_lshl_add_u32 {v(vDK)}, v10, 4, v8")
    I("v_and_b32 v10, 7, v9")
    I("v_lshlrev_b32 v10, 1, v10")
    I("v_xor_b32 v10, v7, v10")
    I(f"v_lshl_add_u32 {v(vDV)}, v10, 4, v8")
    I(f"v_mov_b32 {v(vLN16)}, v3")

def kv_dma(which, buf, m, soff_text):
    base = (KBUF[buf] if which == "K" else VBASE + VBUF[buf]) + 4096*m
    return (f"s_add_u32 m0, {s(sW1024)}, {base}", soff_text,
            f"buffer_load_dwordx4 {v(vDK if which=='K' else vDV)}, {s(sK if which=='K' else sV,4)}, {s(sT)} offen lds")

def gemm(ffn):
    sc = Sec("gemm_ffn" if ffn else "gemm_q"); I = sc.I
    groups = ["G", "U", "Q0", "Q1"] if ffn else ["Q0", "Q1"]
    steps = [(c, u) for c in range(5) for u in groups]
    NS = len(steps); G = len(groups)
    def acc(u, nb, j):
        if u == "Q0": return v(16*nb + 4*j, 4)
        if u == "Q1": return v(64 + 16*nb + 4*j, 4)
        if u == "G": return a(16*nb + 4*j, 4)
        return a(64 + 16*nb + 4*j, 4)
    def wdma(t, m):
        c, u = steps[t]
        if u[0] == "Q": so = (128*c + 32*m)*8192 + (128 if u == "Q1" else 0); sr = sWQ; vo = vDQ
        else: so = (128*c + 32*m)*3456; sr = sW1 if u == "G" else sW3; vo = vDF
        return (f"s_add_u32 m0, {s(sW1024)}, {RING + 16384*(t%4) + 4096*m}", f"s_mov_b32 {s(sT)}, {so}",
                f"buffer_load_dwordx4 {v(vo)}, {s(sr,4)}, {s(sT)} offen lds", f"W{t}")
    def xld(c, j, ks):
        return f"buffer_load_dwordx4 {a(XF + 64*(c%2) + 16*j + 4*ks, 4)}, {v(vXOFF)}, {s(sXN,4)}, {s(sT2)} offen offset:{1024*ks}"
    def xso(c, j): return f"s_mov_b32 {s(sT2)}, {16384*c + 4096*j}"
    def aread(t, nb, ks, hf, buf):
        return f"ds_read_b64_tr_b16 {v(SS + 16*buf + 4*ks + 2*hf, 2)}, {v(vAA+nb)} offset:{16384*(t%4) + 4096*ks + 512*hf}"
    for m in range(4):
        x = wdma(0, m); I(x[0]); I(x[1]); I(x[2], x[3])
    for j in range(4):
        I(xso(0, j))
        for ks in range(4): I(xld(0, j, ks), "X0")
    for t in (1, 2, 3):
        for m in range(4):
            x = wdma(t, m); I(x[0]); I(x[1]); I(x[2], x[3])
    a_setup2(sc)
    I("s_waitcnt @vm:W0")
    I("s_barrier")
    for ks in range(4):
        for hf in range(2): I(aread(0, 0, ks, hf, 0), "A0")
    I("s_waitcnt @vm:X0 lgkmcnt(0)")
    stamp(sc, 1)
    g = Gaps()
    kvq = [("K", 0, m, 0) for m in range(8)] + [("K", 1, m, 32768) for m in range(8)] + [("V", 0, m, 0) for m in range(8)]
    if not ffn: kvq = []
    blk = 0
    for t, (c, u) in enumerate(steps):
        extra = []
        if c < 4:
            per = 16 // G
            i0 = (t % G) * per
            for i in range(i0, i0 + per):
                j, ks = divmod(i, 4)
                extra.append(((xso(c+1, j),) if ks == 0 else (), xld(c+1, j, ks), f"X{c+1}"))
        else:
            per = len(kvq) // G if kvq else 0
            for (wh, bf, m, so) in kvq[(t % G)*per:(t % G + 1)*per]:
                d = kv_dma(wh, bf, m, f"s_mov_b32 {s(sT)}, {so + 4096*m}")
                extra.append(((d[0], d[1]), d[2], "KV0"))
        for nb in range(4):
            buf = blk % 2
            k0 = len(g.m)
            for j in range(4):
                for ks in range(4):
                    d = acc(u, nb, j)
                    cc = "0" if (c == 0 and ks == 0) else d
                    g.add(f"{MF} {d}, {v(SS + 16*buf + 4*ks, 4)}, {a(XF + 64*(c%2) + 16*j + 4*ks, 4)}, {cc}")
            last = (t == NS-1 and nb == 3)
            if not last:
                nt, nnb = (t, nb+1) if nb < 3 else (t+1, 0)
                gp = [1, 2, 3, 4, 5, 6, 7, 8]
                if nb == 3:
                    g.S(k0, f"s_waitcnt @vm:W{t+1}")
                    g.S(k0, "s_barrier")
                n = 0
                for ks in range(4):
                    for hf in range(2):
                        g.M(k0 + gp[n], aread(nt, nnb, ks, hf, 1-buf), f"A{blk+1}"); n += 1
                w = "s_waitcnt lgkmcnt(0)"
                if nb == 3 and (t % G) == G-1: w += f" @vm:X{c+1}"
                g.S(k0 + 15, w)
            if nb == 3 and t + 4 < NS:
                for m in range(4):
                    x = wdma(t+4, m); kk = k0 + [2, 6, 10, 13][m]
                    g.S(kk-1, x[0]); g.S(kk, x[1]); g.M(kk, x[2], x[3])
            if nb < 3:
                mine = extra[nb::3] if False else extra[(len(extra)*nb)//3:(len(extra)*(nb+1))//3]
                slots = [10, 12, 14] if len(mine) <= 3 else None
                for n, (pre, ld, tg) in enumerate(mine):
                    kk = k0 + slots[n]
                    if len(pre) == 2: g.S(kk-1, pre[0]); g.S(kk, pre[1])
                    elif len(pre) == 1: g.S(kk, pre[0])
                    g.M(kk, ld, tg)
            blk += 1
    def qconv(grp):
        ops = []
        for sp in range(2):
            st = 2*grp + sp
            for j in range(4):
                A0 = 64*grp + 32*sp + 4*j; B0 = A0 + 16; D = QF + 16*j + 4*st
                for r in range(4): ops.append(f"v_mul_f32 {v(A0+r)}, {s(sQS)}, {v(A0+r)}")
                for r in range(4): ops.append(f"v_mul_f32 {v(B0+r)}, {s(sQS)}, {v(B0+r)}")
                ops.append(f"v_cvt_pk_bf16_f32 {v(D)}, {v(A0)}, {v(A0+1)}")
                ops.append(f"v_cvt_pk_bf16_f32 {v(D+2)}, {v(B0)}, {v(B0+1)}")
                ops.append(f"v_cvt_pk_bf16_f32 {v(D+1)}, {v(A0+2)}, {v(A0+3)}")
                ops.append(f"v_cvt_pk_bf16_f32 {v(D+3)}, {v(B0+2)}, {v(B0+3)}")
        for sp in range(2):
            st = 2*grp + sp
            for j in range(4):
                D = QF + 16*j + 4*st
                ops.append(f"v_permlane16_swap_b32 {v(D)}, {v(D+2)}")
                ops.append(f"v_permlane16_swap_b32 {v(D+1)}, {v(D+3)}")
        return ops
    def ffn_ep():
        ops = []
        T = QF
        n = 0
        for fs in range(2):
            for j in range(4):
                b = T + 28*(n % 2); n += 1
                gsrc = [16*(2*fs + hb) + 4*j + r for hb in range(2) for r in range(4)]
                for e in range(8): ops.append(f"v_accvgpr_read_b32 {v(b+e)}, {a(gsrc[e])}")
                for e in range(8): ops.append(f"v_mul_f32 {v(b+16+e)}, {s(sNL2E)}, {v(b+e)}")
                for e in range(8): ops.append(f"v_exp_f32 {v(b+16+e)}, {v(b+16+e)}")
                for e in range(8): ops.append(f"v_accvgpr_read_b32 {v(b+8+e)}, {a(64+gsrc[e])}")
                for e in range(8): ops.append(f"v_add_f32 {v(b+16+e)}, 1.0, {v(b+16+e)}")
                for e in range(8): ops.append(f"v_rcp_f32 {v(b+16+e)}, {v(b+16+e)}")
                for e in range(8): ops.append(f"v_mul_f32 {v(b+e)}, {v(b+e)}, {v(b+8+e)}")
                for e in range(8): ops.append(f"v_mul_f32 {v(b+e)}, {v(b+e)}, {v(b+16+e)}")
                for e in range(4): ops.append(f"v_cvt_pk_bf16_f32 {v(b+24+e)}, {v(b+2*e)}, {v(b+2*e+1)}")
                so = "0" if fs == 0 else s(sC4096)
                ops.append(f"buffer_store_dwordx4 {v(b+24,4)}, {v(vHOFF)}, {s(sH,4)}, {so} offen offset:{1024*j}")
        return ops
    n = len(g.m)
    if ffn:
        g.spread(ffn_ep(), n - 128 + 4, n)
        g.emit(sc)
        for o in qconv(0): I(o)
        for o in qconv(1): I(o)
    else:
        g.spread(qconv(0), n - 64 + 4, n)
        g.emit(sc)
        I("s_nop 7")
        for o in qconv(1): I(o)
    stamp(sc, 2)
    return sc

def transposer():
    sc = Sec("transp"); I = sc.I
    srd(sc, sWT, 82, size=8*WT_CT, lit_off=WT_OFF)
    T = 0
    I(f"s_mul_i32 s3, s4, 10240")
    I(f"v_add_u32 {v(T)}, s3, {v(vLN16)}")
    I(f"v_lshrrev_b32 {v(T+2)}, 6, {v(vLN16)}      ; 4g+r'")
    I(f"v_mul_u32_u24 {v(T+1)}, 1280, {v(T+2)}")
    I(f"v_bfe_u32 {v(T+2)}, {v(vLN16)}, 4, 2       ; c")
    I(f"v_lshl_add_u32 {v(T+1)}, {v(T+2)}, 3, {v(T+1)}")
    I(f"s_mul_i32 s7, s4, 320")
    I(f"v_add_u32 {v(T+1)}, s7, {v(T+1)}")
    I(f"s_mul_i32 s7, s4, {2*WT_CT}")
    I(f"v_add_u32 {v(T+2)}, s7, {v(vLN16)}")
    I(f"v_add_u32 {v(T+3)}, {WT_CT}, {v(T+2)}")
    I(f"v_add_u32 {v(T+4)}, 4096, {v(T+2)}")
    I(f"v_add_u32 {v(T+5)}, 4096, {v(T+3)}")
    I("s_barrier")
    def issue(r, lds):
        I(f"s_add_u32 {s(sU)}, {s(sTW)}, {40*r}")
        I(f"s_cmp_lt_u32 {s(sU)}, 54")
        I(f"s_cselect_b32 {s(sSRC)}, {s(sPW2)}, {s(sPWO)}")
        I(f"s_cselect_b32 {s(sSRC+1)}, {s(sPW2+1)}, {s(sPWO+1)}")
        I(f"s_cselect_b32 {s(sSRC+2)}, {1728*1280}, s67")
        I(f"s_cselect_b32 s7, 0, 54")
        I(f"s_mov_b32 {s(sSRC+3)}, 0x20000")
        I(f"s_sub_u32 s7, {s(sU)}, s7")
        I(f"s_mul_i32 s7, s7, 40960")
        for m in range(10):
            if m % 4 == 0:
                I(f"s_add_u32 m0, s3, {lds + 1024*m}")
                I(f"s_add_u32 {s(sT)}, s7, {1024*m}")
            I(f"buffer_load_dwordx4 {v(T)}, {s(sSRC,4)}, {s(sT)} offen offset:{1024*(m%4)} lds", f"T{r}")
    def proc(r, lds):
        I(f"s_add_u32 {s(sU)}, {s(sTW)}, {40*r}")
        I(f"s_mul_i32 {s(sT)}, {s(sU)}, 5120")
        if r == 4:
            I(f"s_cmp_ge_u32 {s(sU)}, 182")
            I(f"s_cbranch_scc1 L_tr_done")
        I(f"v_add_u32 {v(T+6)}, {lds}, {v(T+1)}")
        for half in range(2):
            for nbi in range(5):
                for hf in range(2):
                    I(f"ds_read_b64_tr_b16 {v(16 + 20*half + 4*nbi + 2*hf, 2)}, {v(T+6)} offset:{160*half + 32*nbi + 20480*hf}")
            I("s_waitcnt lgkmcnt(0)")
            for nbi in range(5):
                vo = v(T+2+half) if nbi < 4 else v(T+4+half)
                I(f"buffer_store_dwordx4 {v(16 + 20*half + 4*nbi, 4)}, {vo}, {s(sWT,4)}, {s(sT)} offen offset:{1024*(nbi%4)}")
    I(f"s_mov_b32 s67, {4096*1280}")
    for r in range(3): issue(r, 40960*r)
    for r in range(3):
        I(f"s_waitcnt @vm:T{r}")
        I("s_barrier")
        proc(r, 40960*r)
    I("s_waitcnt vmcnt(20)")
    I("s_barrier")
    for r in (3, 4): issue(r, 65536 + 40960*(r-3))
    for bf in range(2):
        for m in range(8):
            for x in kv_dma("K", bf, m, f"s_mov_b32 {s(sT)}, {32768*bf + 4096*m}"): I(x)
    for r in (3, 4):
        I(f"s_waitcnt @vm:T{r}")
        I("s_barrier")
        proc(r, 65536 + 40960*(r-3))
    I("L_tr_done:")
    I("s_barrier")
    for m in range(8):
        for x in kv_dma("V", 0, m, f"s_mov_b32 {s(sT)}, {4096*m}"): I(x)
    return sc

def kread(dst, buf, blk, t): return f"ds_read_b128 {a(dst + 4*t, 4)}, {v(vKA+t)} offset:{KBUF[buf] + 4096*blk}"
def vread(dst, buf, e, p, u): return f"ds_read_b64_tr_b16 {a(dst + 4*p + 2*u, 2)}, {v(vVA+e)} offset:{VBUF[buf] + 8192*p + 4096*u}"
def pcvt(P, blk, j, hf):
    return f"v_cvt_pk_bf16_f32 {v(P + 16*(blk//2) + 4*j + 2*(blk%2) + hf)}, {v(SS + 4*j + 2*hf)}, {v(SS + 4*j + 2*hf + 1)}"
def sexp(j, r): return f"v_exp_f32 {v(SS + 4*j + r)}, {v(SS + 4*j + r)}"
def qk_group(g, kf, czero=False):
    k0 = len(g.m)
    for j in range(4):
        for t in range(4):
            c = ("0" if czero else v(NEGM + 4*j, 4)) if t == 0 else v(SS + 4*j, 4)
            g.add(f"{MF} {v(SS + 4*j, 4)}, {a(kf + 4*t, 4)}, {v(QF + 16*j + 4*t, 4)}, {c}")
    return k0
def pv_group(g, e, vf, P, first):
    k0 = len(g.m)
    for j in range(4):
        for p in range(4):
            d = a(OA + 16*e + 4*j, 4)
            g.add(f"{MF} {d}, {a(vf + 4*p, 4)}, {v(P + 16*p + 4*j, 4)}, {'0' if (first and p == 0) else d}")
    return k0
def sum_group(g, P, first):
    k0 = len(g.m)
    for j in range(4):
        for p in range(4):
            d = a(LA + 4*j, 4)
            g.add(f"{MF} {d}, {a(ONES, 4)}, {v(P + 16*p + 4*j, 4)}, {'0' if (first and p == 0) else d}")
    return k0
def soft4(g, k, P, blk, j):
    for r in range(4): g.V(k + 2*r, sexp(j, r))
    g.V(k + 3, pcvt(P, blk, j, 0)); g.V(k + 7, pcvt(P, blk, j, 1))

def rowmax_finish(sc, src):
    I = sc.I
    T = vTMP
    for swap in ("v_permlane16_swap_b32", "v_permlane32_swap_b32"):
        for j in range(4): I(f"v_mov_b32 {v(T+j)}, {v(src+j)}")
        I("s_nop 0")
        for j in range(4): I(f"{swap} {v(src+j)}, {v(T+j)}")
        for j in range(4): I(f"v_max_f32 {v(src+j)}, {v(src+j)}, {v(T+j)}")
    for j in range(4):
        for r in range(4): I(f"v_sub_f32 {v(NEGM + 4*j + r)}, 0, {v(src+j)}")

def standin():
    sc = Sec("standin"); I = sc.I
    I("L_a_attn:")
    I(f"v_mov_b32 {v(vTMP)}, 0x3f803f80")
    for r in range(4): I(f"v_accvgpr_write_b32 {a(ONES+r)}, {v(vTMP)}")
    I("s_waitcnt vmcnt(0)")
    I("s_barrier")
    for t in range(4): I(kread(KF, 0, 0, t))
    I("s_waitcnt lgkmcnt(0)")
    g = Gaps(); qk_group(g, KF, czero=True); g.emit(sc)
    I("s_nop 7")
    for j in range(4):
        I(f"v_max3_f32 {v(P1+j)}, {v(SS+4*j)}, {v(SS+4*j+1)}, {v(SS+4*j+2)}")
        I(f"v_max_f32 {v(P1+j)}, {v(P1+j)}, {v(SS+4*j+3)}")
    rowmax_finish(sc, P1)
    return sc

def prephase():
    sc = Sec("pre"); I = sc.I
    I("L_a_pre:")
    I(f"s_mov_b32 {s(sKOFF)}, 32768")
    I(f"s_mov_b32 {s(sCNT)}, 7")
    g = Gaps()
    for blk in range(8):
        kf = KF if blk % 2 == 0 else VF
        k0 = qk_group(g, kf)
        if blk < 7:
            for t in range(4): g.M(k0 + 3 + (t//2)*4, kread(VF if blk % 2 == 0 else KF, 0, blk+1, t))
            g.S(k0 + 15, "s_waitcnt lgkmcnt(0)")
        else:
            g.S(k0, "s_barrier")
    for n in range(30):
        blk, j = divmod(n, 4)
        for r in range(4): g.V(4*n + 8 + r, sexp(j, r))
        g.V(4*n + 11, pcvt(P0, blk, j, 0)); g.V(4*n + 11, pcvt(P0, blk, j, 1))
    g.emit(sc)
    for r in range(4): I(sexp(2, r))
    I(pcvt(P0, 7, 2, 0)); I(pcvt(P0, 7, 2, 1))
    stamp(sc, 3)
    return sc

def period(par, first=False, name=None, loop_end=None):
    sc = Sec(name); I = sc.I
    Pc, Pn = (P0, P1) if par == 0 else (P1, P0)
    kb = 1 - par; vb = par
    g = Gaps()
    dm = []
    for m in range(8):
        dm.append(kv_dma("V", 1-par, m, f"s_add_u32 {s(sT)}, {s(sKOFF)}, {4096*m}"))
        dm.append(kv_dma("K", par, m, f"s_add_u32 {s(sT)}, {s(sKOFF)}, {32768 + 4096*m}"))
    def put_dma(k):
        if not dm: return
        d = dm.pop(0)
        g.S(k-1, d[0]); g.S(k, d[1]); g.M(k, d[2])
    k0 = sum_group(g, Pc, first)
    soft4(g, k0, Pc, 7, 3)
    for t in range(4): g.M(k0 + [1, 3, 5, 7][t], kread(KF, kb, 0, t))
    for k in (1, 5, 9, 13): put_dma(k0 + k)
    g.S(k0 + 15, "s_waitcnt lgkmcnt(0)")
    for blk in range(8):
        k0 = qk_group(g, KF)
        if blk > 0: soft4(g, k0, Pn, blk-1, 3)
        soft4(g, k0 + 8, Pn, blk, 0)
        gp = [1, 1, 3, 5, 5, 7, 9, 9]
        for n in range(8): g.M(k0 + gp[n], vread(VF, vb, blk, n//2, n%2))
        put_dma(k0 + 13)
        g.S(k0 + 15, "s_waitcnt lgkmcnt(4)")
        k0 = pv_group(g, blk, VF, Pc, first)
        g.S(k0 + 1, "s_waitcnt lgkmcnt(0)")
        soft4(g, k0, Pn, blk, 1)
        soft4(g, k0 + 8, Pn, blk, 2)
        if blk < 7:
            for t in range(4): g.M(k0 + [1, 3, 5, 7][t], kread(KF, kb, blk+1, t))
            for k in (5, 9, 13): put_dma(k0 + k)
            g.S(k0 + 15, "s_waitcnt lgkmcnt(0)")
        else:
            g.S(k0 + 9, "s_waitcnt vmcnt(0)")
            g.S(k0 + 9, "s_barrier")
            g.S(k0 + 11, f"s_add_u32 {s(sKOFF)}, {s(sKOFF)}, 32768")
            if loop_end:
                g.S(k0 + 13, f"s_sub_u32 {s(sCNT)}, {s(sCNT)}, 1")
                g.S(k0 + 14, f"s_cmp_lg_u32 {s(sCNT)}, 0")
    assert not dm
    g.emit(sc)
    if loop_end: I(f"s_cbranch_scc1 {loop_end}")
    return sc

def final():
    sc = Sec("final"); I = sc.I
    stamp(sc, 4)
    g = Gaps()
    Pc = P1; vb = 1
    k0 = sum_group(g, Pc, False)
    soft4(g, k0, Pc, 7, 3)
    gp = [1, 1, 3, 5, 5, 7, 9, 9]
    for n in range(8): g.M(k0 + gp[n], vread(VF, vb, 0, n//2, n%2))
    g.S(k0 + 15, "s_waitcnt lgkmcnt(0)")
    ks = []
    for e in range(8):
        vf = VF if e % 2 == 0 else KF
        k0 = pv_group(g, e, vf, Pc, False); ks.append(k0)
        if e < 7:
            for n in range(8): g.M(k0 + 1 + n, vread(KF if e % 2 == 0 else VF, vb, e+1, n//2, n%2))
            g.S(k0 + 15, "s_waitcnt lgkmcnt(0)")
    RI = vTMP
    ops = []
    for j in range(4): ops.append(f"v_accvgpr_read_b32 {v(SS+j)}, {a(LA + 4*j)}")
    for j in range(4): ops.append(f"v_rcp_f32 {v(RI+j)}, {v(SS+j)}")
    ops.append(f"v_add_f32 {v(SS+5)}, {v(SS)}, {v(SS+1)}")
    ops.append(f"v_add_f32 {v(SS+5)}, {v(SS+5)}, {v(SS+2)}")
    ops.append(f"v_add_f32 {v(SS+5)}, {v(SS+5)}, {v(SS+3)}")
    ops.append(f"v_cmp_ngt_f32 vcc, {f32(2.0**64)}, {v(SS+5)}")
    g.spread(ops, ks[0] + 9, ks[1] + 16)
    def oconv(st):
        ops = []
        for j in range(4):
            b = P0 + 12*j
            src = [OA + 16*(2*st + hb) + 4*j + r for hb in range(2) for r in range(4)]
            for e in range(8): ops.append(f"v_accvgpr_read_b32 {v(b+e)}, {a(src[e])}")
            for e in range(8): ops.append(f"v_mul_f32 {v(b+e)}, {v(b+e)}, {v(RI+j)}")
            for e in range(4): ops.append(f"v_cvt_pk_bf16_f32 {v(b+8+e)}, {v(b+2*e)}, {v(b+2*e+1)}")
            so = "0" if st == 0 else s(sC4096 + st - 1)
            ops.append(f"buffer_store_dwordx4 {v(b+8,4)}, {v(vOOFF)}, {s(sO,4)}, {so} offen offset:{1024*j}")
        return ops
    for st in range(3): g.spread(oconv(st), ks[2*st+2] + 4, ks[2*st+3] + 16)
    g.emit(sc)
    I("s_cmp_lg_u64 vcc, 0")
    I("s_cselect_b32 s3, 1, 0")
    I(f"v_mov_b32 {v(SS+6)}, s3")
    I(f"s_lshl_b32 s7, s4, 2")
    I(f"s_add_u32 s7, s7, {FLAGS}")
    I(f"v_mov_b32 {v(SS+7)}, s7")
    I(f"ds_write_b32 {v(SS+7)}, {v(SS+6)}")
    I(f"v_mov_b32 {v(SS+7)}, {FLAGS}")
    for o in oconv(3): I(o)
    I("s_waitcnt lgkmcnt(0)")
    I("s_barrier")
    I(f"ds_read_b128 {v(SS+8,4)}, {v(SS+7)}")
    I("s_waitcnt lgkmcnt(0)")
    I(f"v_or3_b32 {v(SS+8)}, {v(SS+8)}, {v(SS+9)}, {v(SS+10)}")
    I(f"v_or_b32 {v(SS+8)}, {v(SS+8)}, {v(SS+11)}")
    I("s_nop 0")
    I(f"v_readfirstlane_b32 s3, {v(SS+8)}")
    I("s_nop 3")
    I(f"s_andn2_b32 s3, s3, {s(sRETRY)}")
    I("s_cmp_lg_u32 s3, 0")
    I("s_cbranch_scc1 L_a_truemax")
    if OPT["stamp"]:
        stamp(sc, 5)
        I("s_waitcnt vmcnt(0)")
        stamp(sc, 6)
        srd(sc, sSTP, 82, size=1024*256, lit_off=ST_OFF)
        I(f"s_lshl_b32 s3, s2, 10")
        I(f"s_lshl_b32 s7, s4, 8")
        I("s_add_u32 s3, s3, s7")
        I(f"v_lshrrev_b32 v254, 2, {v(vLN16)}")
        I(f"buffer_store_dword v255, v254, {s(sSTP,4)}, s3 offen")
    I("L_a_end:")
    I("s_endpgm")
    return sc

def truemax():
    s1 = Sec("tm_a"); I = s1.I
    MX = P1
    I("L_a_truemax:")
    I(f"s_mov_b32 {s(sRETRY)}, 1")
    for j in range(4): I(f"v_mov_b32 {v(MX+j)}, 0xff800000")
    I(f"s_mov_b32 {s(sKOFF)}, 0")
    s2 = Sec("tm_b"); I = s2.I
    I("L_tm_tile:")
    I("s_barrier")
    for m in range(8):
        for x in kv_dma("K", 0, m, f"s_add_u32 {s(sT)}, {s(sKOFF)}, {4096*m}"): I(x)
    I("s_waitcnt vmcnt(0)")
    I("s_barrier")
    for t in range(4): I(f"v_mov_b32 {v(P0+t)}, {v(vKA+t)}")
    I(f"s_mov_b32 {s(sCNT)}, 8")
    s3 = Sec("tm_c"); I = s3.I
    I("L_tm_blk:")
    for t in range(4): I(f"ds_read_b128 {a(KF + 4*t, 4)}, {v(P0+t)}")
    for t in range(4): I(f"v_add_u32 {v(P0+t)}, 4096, {v(P0+t)}")
    I("s_waitcnt lgkmcnt(0)")
    g = Gaps(); qk_group(g, KF, czero=True); g.emit(s3)
    I("s_nop 7")
    for j in range(4):
        I(f"v_max3_f32 {v(MX+j)}, {v(MX+j)}, {v(SS+4*j)}, {v(SS+4*j+1)}")
        I(f"v_max3_f32 {v(MX+j)}, {v(MX+j)}, {v(SS+4*j+2)}, {v(SS+4*j+3)}")
    I(f"s_sub_u32 {s(sCNT)}, {s(sCNT)}, 1")
    I(f"s_cmp_lg_u32 {s(sCNT)}, 0")
    I("s_cbranch_scc1 L_tm_blk")
    s4 = Sec("tm_d"); I = s4.I
    I(f"s_add_u32 {s(sKOFF)}, {s(sKOFF)}, 32768")
    I(f"s_cmp_lt_u32 {s(sKOFF)}, 524288")
    I("s_cbranch_scc1 L_tm_tile")
    s5 = Sec("tm_e"); I = s5.I
    I("s_barrier")
    for bf in range(2):
        for m in range(8):
            for x in kv_dma("K", bf, m, f"s_mov_b32 {s(sT)}, {32768*bf + 4096*m}"): I(x)
    for m in range(8):
        for x in kv_dma("V", 0, m, f"s_mov_b32 {s(sT)}, {4096*m}"): I(x)
    rowmax_finish(s5, MX)
    I("s_waitcnt vmcnt(0)")
    I("s_barrier")
    for t in range(4): I(kread(KF, 0, 0, t))
    I("s_waitcnt lgkmcnt(0)")
    I("s_branch L_a_pre")
    return [s1, s2, s3, s4, s5]

def gen_attn():
    st = a_setup()
    st.I(f"s_cmp_ge_u32 {s(sHH)}, 27")
    st.I("s_cbranch_scc1 L_a_noffn")
    g1 = gemm(True)
    si = standin(); pre = prephase()
    p0 = period(0, first=True, name="p0")
    lp = Sec("lp"); lp.I(".p2align 3"); lp.I("L_a_loop:")
    p1 = period(1, name="p1"); p2 = period(0, name="p2", loop_end="L_a_loop")
    fin = final()
    tm = truemax()
    nf = Sec("nf"); nf.I("L_a_noffn:")
    g2 = gemm(False); tr = transposer(); tr.I("s_branch L_a_attn")
    resolve_waits([g1]); resolve_waits([g2, tr])
    order = [st, g1, si, pre, p0, lp, p1, p2, fin] + tm + [nf, g2, tr]
    main = [si, pre, p0, p1, p2, p1, p2, fin]
    traces = [[st, g1] + main, [st, g2, tr] + main,
              [fin, tm[0], tm[1], tm[2], tm[2], tm[3], tm[1], tm[2], tm[3], tm[4], pre, p0]]
    for x in (g1, g2, si, pre, p0, p1, p2, fin): print(f"  est {x.name}: cycles={est_cycles(x)}", file=sys.stderr)
    return order, traces, kdesc("attn_kernel", 512, 256, 96)

def gen_out():
    sc = Sec("out"); I = sc.I
    sHB, sOB, sW2, sWO, sX, sOUT = 8, 12, 16, 20, 24, 28
    sA, sB = 32, 33
    NST = 7
    def frag(stage, f):
        n = 9*stage + f
        return v(4*n, 4) if n < 56 else a(160 + 4*(n-56), 4)
    vB = 224
    vA = 228
    vXO = 230; vWR = 231
    vRD = 234; XR = 236
    GA = 188
    I("out_kernel:")
    I("s_cmp_ge_u32 s2, 256")
    I("s_cbranch_scc1 L_o_end")
    I("s_load_dwordx2 s[4:5], s[0:1], 0       ; x")
    I("s_load_dwordx2 s[6:7], s[0:1], 72      ; out")
    I("s_load_dwordx2 s[34:35], s[0:1], 88    ; ws")
    if OPT["stamp"]: I("v_mov_b32 v255, 0")
    I("v_lshrrev_b32 v246, 6, v0              ; w")
    I("v_and_b32 v247, 63, v0")
    I("v_lshlrev_b32 v248, 4, v247            ; 16*lane")
    I("s_bfe_u32 s36, s2, 0x20001")
    I("s_lshl_b32 s36, s36, 3")
    I("s_bfe_u32 s37, s2, 0x30003")
    I("s_add_u32 s36, s36, s37                ; rt")
    I("s_and_b32 s37, s2, 1")
    I("s_lshl_b32 s37, s37, 2")
    I("s_lshr_b32 s38, s2, 6")
    I("s_add_u32 s37, s37, s38                ; ct")
    I("v_lshl_add_u32 v249, v246, 12, v248")
    for jj in range(4):
        I(f"v_add_u32 v250, {jj}, v246")
        I("v_and_b32 v250, 3, v250")
        I(f"v_lshl_add_u32 {v(vB+jj)}, v250, 10, v249")
        if jj:
            I(f"v_mul_u32_u24 v250, 30720, v250")
            I(f"v_add_u32 v250, {5120*(jj-1)}, v250")
            I(f"v_add_u32 {v(vWR+jj-1)}, v250, v248")
    I(f"v_mul_u32_u24 {v(vA)}, 5120, v246")
    I(f"v_add_u32 {v(vA)}, {v(vA)}, v248")
    I(f"v_add_u32 {v(vA+1)}, 4096, {v(vA)}")
    I("s_waitcnt lgkmcnt(0)")
    I(f"s_mul_i32 s38, s36, {H_RT}")
    srd(sc, sHB, 34, off_lo=38, size=H_RT, lit_off=H_OFF)
    I(f"s_mul_i32 s38, s37, {WT_CT}")
    srd(sc, sW2, 34, off_lo=38, size=54*5120, lit_off=WT_OFF)
    srd(sc, sWO, 34, off_lo=38, size=128*5120, lit_off=WT_OFF + 54*5120)
    I(f"s_lshl_b32 s38, s36, 19")
    srd(sc, sOB, 34, off_lo=38, size=O_RT, lit_off=O_OFF)
    stamp(sc, 0)
    NS = 46
    def loads(n):
        i = n if n < 14 else n - 14
        sb, sa = (sHB, sW2) if n < 14 else (sOB, sWO)
        st = n % NST
        L = [(f"s_mov_b32 {s(sA)}, {20480*i}", None), (f"s_mov_b32 {s(sB)}, {16384*i}", None)]
        order = [0, 5, 1, 6, 2, 7, 3, 8, 4]
        for f in order:
            if f < 5:
                vo = v(vA) if f < 4 else v(vA+1)
                L.append((f"buffer_load_dwordx4 {frag(st, f)}, {vo}, {s(sa,4)}, {s(sA)} offen offset:{1024*(f%4)}", f"S{n}"))
            else:
                L.append((f"buffer_load_dwordx4 {frag(st, f)}, {v(vB+f-5)}, {s(sb,4)}, {s(sB)} offen", f"S{n}"))
        return L
    for n in range(NST-1):
        for t, tg in loads(n): I(t, tg)
    I(f"s_mul_i32 s38, s36, 81920")
    I(f"s_mul_i32 s39, s37, 160")
    I("s_add_u32 s38, s38, s39")
    srd(sc, sX, 4, off_lo=38, size=f"s_sub_u32 {s(sX+2)}, {2048*1280}, s38")
    srd(sc, sOUT, 6, off_lo=38, size=f"s_sub_u32 {s(sOUT+2)}, {2048*1280}, s38")
    I("v_and_b32 v250, 15, v247")
    I("v_lshl_add_u32 v250, v246, 4, v250     ; 16w + q")
    I(f"v_mul_u32_u24 {v(vXO)}, 1280, v250")
    I("v_lshrrev_b32 v250, 4, v247")
    I(f"v_lshl_add_u32 {v(vXO)}, v250, 3, {v(vXO)}")
    I(f"v_mul_u32_u24 {v(vRD)}, 30720, v246")
    I(f"v_add_u32 {v(vRD)}, {v(vRD)}, v248")
    I(f"s_mov_b32 s40, {f32(-math.log2(math.e))}")
    def accr(set_, nbi, jj): return 80*set_ + 20*jj + 4*nbi
    g = Gaps()
    def redwrite(set_):
        return [f"ds_write_b128 {v(vWR+jj-1)}, {a(accr(set_, nbi, jj), 4)} offset:{15360*set_ + 1024*nbi}" for jj in (1, 2, 3) for nbi in range(5)]
    T = 246
    kstart = []
    I("s_waitcnt @vm:S0")
    stamp(sc, 1)
    for n in range(NS):
        set_ = 0 if n < 14 else 1
        st = n % NST
        k0 = len(g.m); kstart.append(k0)
        for jj in range(4):
            for nbi in range(5):
                d = a(accr(set_, nbi, jj), 4)
                g.add(f"{MF} {d}, {frag(st, nbi)}, {frag(st, 5+jj)}, {'0' if n in (0, 14) else d}")
        if n + NST - 1 < NS:
            L = loads(n + NST - 1)
            g.S(k0, L[0][0]); g.S(k0 + 1, L[1][0])
            for m, (t, tg) in enumerate(L[2:]): g.M(k0 + 1 + 2*m, t, tg)
        if n == 30:
            for nbi in range(5): g.M(k0 + 2*nbi, f"buffer_load_dwordx2 {v(XR+2*nbi,2)}, {v(vXO)}, {s(sX,4)}, 0 offen offset:{32*nbi}", "XT")
        if n + 1 < NS: g.S(k0 + 19, f"s_waitcnt @vm:S{n+1}")
    for m, t in enumerate(redwrite(0)): g.M(kstart[15 + m//8] + 2*(m % 8), t)
    g.S(kstart[18], "s_waitcnt lgkmcnt(0)"); g.S(kstart[18], "s_barrier")
    for nbi in range(5):
        k0 = kstart[19 + nbi]
        for sr in range(3): g.M(k0 + 2*sr, f"ds_read_b128 {a(208 + 4*sr, 4)}, {v(vRD)} offset:{5120*sr + 1024*nbi}")
        g.S(k0 + 10, "s_waitcnt lgkmcnt(0)")
        ops = []
        for r in range(4): ops.append(f"v_accvgpr_read_b32 {v(T+r)}, {a(accr(0, nbi, 0) + r)}")
        for sr in range(3):
            for r in range(4): ops.append(f"v_accvgpr_read_b32 {v(T+4+r)}, {a(208 + 4*sr + r)}")
            for r in range(4): ops.append(f"v_add_f32 {v(T+r)}, {v(T+r)}, {v(T+4+r)}")
        for r in range(4): ops.append(f"v_mul_f32 {v(T+4+r)}, s40, {v(T+r)}")
        for r in range(4): ops.append(f"v_exp_f32 {v(T+4+r)}, {v(T+4+r)}")
        for r in range(4): ops.append(f"v_add_f32 {v(T+4+r)}, 1.0, {v(T+4+r)}")
        for r in range(4): ops.append(f"v_rcp_f32 {v(T+4+r)}, {v(T+4+r)}")
        for r in range(4): ops.append(f"v_mul_f32 {v(T+r)}, {v(T+r)}, {v(T+4+r)}")
        for r in range(4): ops.append(f"v_accvgpr_write_b32 {a(GA + 4*nbi + r)}, {v(T+r)}")
        g.spread(ops, k0 + 10, k0 + 20)
    g.emit(sc)
    stamp(sc, 2)
    I("s_nop 7")
    for t in redwrite(1): I(t)
    for i in range(20): I(f"v_accvgpr_read_b32 {v(i)}, {a(accr(1, 0, 0) + i)}")
    for i in range(20): I(f"v_accvgpr_read_b32 {v(20+i)}, {a(GA + i)}")
    I("s_mov_b32 s41, 0xffff0000")
    I("s_waitcnt @vm:XT")
    for nbi in range(5):
        for h2 in range(2):
            I(f"v_lshlrev_b32 {v(40 + 4*nbi + 2*h2)}, 16, {v(XR + 2*nbi + h2)}")
            I(f"v_and_b32 {v(41 + 4*nbi + 2*h2)}, s41, {v(XR + 2*nbi + h2)}")
    I("s_waitcnt lgkmcnt(0)")
    I("s_barrier")
    for nbi in range(5):
        for sr in range(3): I(f"ds_read_b128 {v(64 + 12*nbi + 4*sr, 4)}, {v(vRD)} offset:{15360 + 5120*sr + 1024*nbi}", f"R{nbi}")
    for nbi in range(5):
        I(f"s_waitcnt @lg:R{nbi}")
        for sr in range(3):
            for h2 in range(2):
                I(f"v_pk_add_f32 {v(4*nbi + 2*h2, 2)}, {v(4*nbi + 2*h2, 2)}, {v(64 + 12*nbi + 4*sr + 2*h2, 2)}")
        for h2 in range(2):
            I(f"v_pk_fma_f32 {v(4*nbi + 2*h2, 2)}, {v(4*nbi + 2*h2, 2)}, {v(20 + 4*nbi + 2*h2, 2)}, {v(40 + 4*nbi + 2*h2, 2)}")
        for h2 in range(2):
            I(f"v_cvt_pk_bf16_f32 {v(XR + 2*nbi + h2)}, {v(4*nbi + 2*h2)}, {v(4*nbi + 2*h2 + 1)}")
        I(f"buffer_store_dwordx2 {v(XR+2*nbi,2)}, {v(vXO)}, {s(sOUT,4)}, 0 offen offset:{32*nbi}")
    if OPT["stamp"]:
        stamp(sc, 3)
        I("s_waitcnt vmcnt(0)")
        stamp(sc, 4)
        srd(sc, sSTP, 34, size=1024*256, lit_off=ST_OFF + 0x40000)
        I(f"s_lshl_b32 s3, s2, 10")
        I(f"v_lshrrev_b32 v254, 12, {v(vB)}")
        I(f"v_lshlrev_b32 v254, 8, v254")
        I(f"v_bfe_u32 v253, {v(vB)}, 4, 6")
        I(f"v_lshl_add_u32 v254, v253, 2, v254")
        I(f"buffer_store_dword v255, v254, {s(sSTP,4)}, s3 offen")
    I("L_o_end:")
    I("s_endpgm")
    resolve_waits([sc])
    print(f"  est out: cycles={est_cycles(sc)}", file=sys.stderr)
    return [sc], [[sc]], kdesc("out_kernel", 512, 256, 96)

def main():
    ref = open(f"cdna_kernels/{NAME}.s.ref").read().split("\n")
    hdr = [l for l in ref if l.startswith(";") and "@launch" not in l and "Override launch" not in l and "grid=ceil" not in l]
    out = hdr[:]
    out.append("; @launch kernel=ln_kernel grid=(256,1,1) block=(128,1,1) lds=0")
    out.append("; @launch kernel=attn_kernel grid=(256,1,1) block=(256,1,1) lds=163840")
    out.append("; @launch kernel=out_kernel grid=(256,1,1) block=(256,1,1) lds=122880")
    out.append('.amdgcn_target "amdgcn-amd-amdhsa--gfx950"')
    out.append(".text")
    kds = []; nerr = 0
    for nm, fn in (("ln_kernel", gen_ln), ("attn_kernel", gen_attn), ("out_kernel", gen_out)):
        secs, traces, kd = fn()
        out.append(f".globl {nm}\n.p2align 8\n.type {nm},@function")
        for sc in secs: out.append(sc.text())
        kds.append(kd)
        for n, tr in enumerate(traces):
            errs = check_trace(tr, f"{nm}/{n}")
            for e in errs[:20]: print(e, file=sys.stderr)
            nerr += len(errs)
    out.append('.section .rodata,"a"')
    out += kds
    open(sys.argv[1], "w").write("\n".join(out) + "\n")
    print(f"hazard problems: {nerr}", file=sys.stderr)
main()
```

```python
import sys, math, struct
from asmlib import *

NAME = "recurrent_scan__gqa_block_cached__glu_gated_swiglu__prompt"
OPT = dict(stamp=0, bexp=0, brep=1)
for x in sys.argv[2:]:
    k, val = x.split("="); OPT[k] = int(val)

def f32(x): return "0x%08x" % struct.unpack("<I", struct.pack("<f", x))[0]

XN_OFF = 0x0000000
H_OFF  = 0x0300000
O_OFF  = 0x0A00000
WT_OFF = 0x1A00000
ST_OFF = 0x2400000
H_RT = 54 * 4096; O_RT = 128 * 4096; WT_CT = 182 * 5120
MF = "v_mfma_f32_16x16x32_bf16"

def srd(sec, d, base, off_lo=None, size=None, lit_off=0):
    if lit_off:
        sec.I(f"s_add_u32 {s(d)}, {s(base)}, {hex(lit_off)}")
        sec.I(f"s_addc_u32 {s(d+1)}, {s(base+1)}, 0")
        b = d
    else: b = base
    if off_lo is not None:
        sec.I(f"s_add_u32 {s(d)}, {s(b)}, {s(off_lo)}")
        sec.I(f"s_addc_u32 {s(d+1)}, {s(b+1)}, 0")
    elif not lit_off:
        sec.I(f"s_mov_b32 {s(d)}, {s(base)}")
        sec.I(f"s_mov_b32 {s(d+1)}, {s(base+1)}")
    if isinstance(size, int): sec.I(f"s_mov_b32 {s(d+2)}, {hex(size)}")
    else: sec.I(size)
    sec.I(f"s_mov_b32 {s(d+3)}, 0x20000")

def gen_ln():
    sc = Sec("ln"); I = sc.I
    I("ln_kernel:")
    I("s_cmp_ge_u32 s2, 256")
    I("s_cbranch_scc1 L_ln_end")
    I("s_load_dwordx2 s[4:5], s[0:1], 0")
    I("s_load_dwordx2 s[6:7], s[0:1], 88")
    I("v_lshrrev_b32 v1, 4, v0")
    I("s_lshl_b32 s3, s2, 3")
    I("v_add_u32 v1, s3, v1")
    I("v_and_b32 v2, 15, v0             ; p")
    I("v_mul_u32_u24 v3, 1280, v1")
    I("v_lshl_add_u32 v3, v2, 4, v3")
    I("s_waitcnt lgkmcnt(0)")
    srd(sc, 8, 4, size=2048*1280)
    srd(sc, 12, 6, size=2048*1280, lit_off=XN_OFF)
    for i in range(5):
        I(f"buffer_load_dwordx4 {v(8+4*i,4)}, v3, s[8:11], 0 offen offset:{256*i}")
    I("v_lshrrev_b32 v4, 6, v1")
    I("v_mul_u32_u24 v4, 81920, v4")
    I("v_bfe_u32 v5, v1, 4, 2")
    I("v_lshl_add_u32 v4, v5, 12, v4")
    I("v_and_b32 v5, 15, v1")
    I("v_lshl_add_u32 v4, v5, 4, v4")
    I("v_lshl_add_u32 v4, v2, 8, v4     ; p*256 == (p>>2)*1024 + (p&3)*256")
    I("s_mov_b32 s16, 0xffff0000")
    for i in range(5):
        I(f"s_waitcnt vmcnt({4-i})")
        for r in range(4):
            d = 4*i + r
            I(f"v_lshlrev_b32 {v(32+2*d)}, 16, {v(8+d)}")
            I(f"v_and_b32 {v(33+2*d)}, s16, {v(8+d)}")
    I("v_pk_add_f32 v[6:7], v[32:33], v[34:35]")
    for d in range(2, 20): I(f"v_pk_add_f32 v[6:7], v[6:7], {v(32+2*d,2)}")
    I("v_add_f32 v6, v6, v7")
    def rowsum(r):
        for sh in (8, 4, 2, 1):
            I("s_nop 1")
            I(f"v_add_f32_dpp {v(r)}, {v(r)}, {v(r)} row_ror:{sh} row_mask:0xf bank_mask:0xf")
    rowsum(6)
    I(f"v_mul_f32 v6, {f32(-1.0/640)}, v6     ; -mean")
    I("v_mov_b32 v7, v6")
    for d in range(20): I(f"v_pk_add_f32 {v(32+2*d,2)}, {v(32+2*d,2)}, v[6:7]")
    I("v_pk_mul_f32 v[6:7], v[32:33], v[32:33]")
    for d in range(1, 20): I(f"v_pk_fma_f32 v[6:7], {v(32+2*d,2)}, {v(32+2*d,2)}, v[6:7]")
    I("v_add_f32 v6, v6, v7")
    rowsum(6)
    I(f"v_mov_b32 v7, {f32(1e-5)}")
    I(f"v_fmac_f32 v7, {f32(1.0/640)}, v6")
    I("v_rsq_f32 v6, v7")
    I("s_nop 0")
    I("v_mov_b32 v7, v6")
    for d in range(20): I(f"v_pk_mul_f32 {v(32+2*d,2)}, {v(32+2*d,2)}, v[6:7]")
    for i in range(5):
        for r in range(4):
            d = 4*i + r
            I(f"v_cvt_pk_bf16_f32 {v(8+d)}, {v(32+2*d)}, {v(33+2*d)}")
        I(f"s_mov_b32 s17, {16384*i}")
        I(f"buffer_store_dwordx4 {v(8+4*i,4)}, v4, s[12:15], s17 offen")
    I("L_ln_end:")
    I("s_endpgm")
    return [sc], [[sc]], kdesc("ln_kernel", 72, 72, 32)

sK, sV, sWQ, sW1, sW3, sXN, sH, sO = 8, 12, 16, 20, 24, 28, 32, 36
sSRC, sWT = 20, 24
sW1024 = 40; sT = 41; sKOFF = 42; sCNT = 43; sHH = 44; sC4096 = 45
sRETRY = 48; sTW = 49; sU = 50; sQS = 51; sNL2E = 52; sM0K = 53; sM0V = 54; sT2 = 55
sPWO, sPW2 = 56, 58
sSTP = 60
P0, P1, QF, SS, NEGM = 0, 64, 128, 192, 208
vKA, vVA, vDK, vDV = 224, 228, 236, 237
vLN16 = 238
vXOFF, vDQ, vDF, vAA = 239, 240, 241, 242
vOOFF, vHOFF = 246, 247
vTMP = 248
OA, LA, KF, VF, ONES = 0, 128, 144, 160, 176
XF = 128
RING = 98304
KBUF = [0, 32768]; VBASE = 65536; VBUF = [0, 32768]
FLAGS = 131072

def stamp(sec, idx):
    if not OPT["stamp"]: return
    sec.I(f"s_memtime s[64:65]")
    sec.I(f"s_waitcnt lgkmcnt(0)")
    sec.I(f"v_writelane_b32 v255, s64, {idx}")
    sec.I(f"s_memrealtime s[64:65]")
    sec.I(f"s_waitcnt lgkmcnt(0)")
    sec.I(f"v_writelane_b32 v255, s64, {idx+32}")

def a_setup():
    sc = Sec("a_setup"); I = sc.I
    I("attn_kernel:")
    I("s_cmp_ge_u32 s2, 256")
    I("s_cbranch_scc1 L_a_end")
    I("s_load_dwordx4 s[68:71], s[0:1], 8      ; K, V")
    I("s_load_dwordx4 s[72:75], s[0:1], 24")
    I("s_load_dwordx4 s[76:79], s[0:1], 48     ; w1, w3")
    I("s_load_dwordx2 s[80:81], s[0:1], 64     ; w2")
    I("s_load_dwordx2 s[82:83], s[0:1], 88     ; ws")
    if OPT["stamp"]: I("v_mov_b32 v255, 0")
    I("v_lshrrev_b32 v1, 6, v0")
    I("v_and_b32 v2, 63, v0                   ; lane")
    I(f"v_readfirstlane_b32 s4, v1")
    I("s_and_b32 s5, s2, 7")
    I("s_lshl_b32 s5, s5, 2")
    I("s_bfe_u32 s6, s2, 0x20003")
    I("s_add_u32 s5, s5, s6                   ; head")
    I("s_lshr_b32 s6, s2, 5                   ; q tile")
    I(f"s_and_b32 {s(sHH)}, s2, 31")
    I(f"s_lshl_b32 {s(sW1024)}, s4, 10")
    I(f"v_lshlrev_b32 v3, 4, v2                ; 16*lane")
    I(f"v_mul_u32_u24 {v(vXOFF)}, 81920, v1")
    I(f"v_add_u32 {v(vXOFF)}, {v(vXOFF)}, v3")
    I("v_lshrrev_b32 v4, 3, v0                ; 8w + l>>3")
    I("v_bfe_u32 v5, v0, 4, 1")
    I("v_bfe_u32 v6, v0, 6, 1")
    I("v_lshl_add_u32 v5, v6, 1, v5")
    I("v_lshlrev_b32 v5, 1, v5")
    I("v_and_b32 v6, 7, v0")
    I("v_xor_b32 v5, v5, v6")
    I("v_lshlrev_b32 v5, 4, v5")
    I(f"v_lshl_add_u32 {v(vDQ)}, v4, 13, v5")
    I(f"v_mul_u32_u24 {v(vDF)}, 3456, v4")
    I(f"v_add_u32 {v(vDF)}, {v(vDF)}, v5")
    I("s_waitcnt lgkmcnt(0)")
    I("s_mul_i32 s7, s6, 4*81920")
    srd(sc, sXN, 82, off_lo=7, size=4*81920, lit_off=XN_OFF)
    I("s_lshl_b32 s7, s5, 8")
    srd(sc, sWQ, 72, off_lo=7, size=f"s_sub_u32 {s(sWQ+2)}, {640*8192}, s7")
    I(f"s_min_u32 s7, {s(sHH)}, 26")
    I(f"s_lshl_b32 s7, s7, 7")
    srd(sc, sW1, 76, off_lo=7, size=f"s_sub_u32 {s(sW1+2)}, {640*3456}, s7")
    srd(sc, sW3, 78, off_lo=7, size=f"s_sub_u32 {s(sW3+2)}, {640*3456}, s7")
    I(f"s_mov_b32 {s(sC4096)}, 4096")
    I(f"s_mov_b32 {s(sC4096+1)}, 8192")
    I(f"s_mov_b32 {s(sC4096+2)}, 12288")
    stamp(sc, 0)
    return sc

def a_setup2(sc):
    I = sc.I
    I("s_lshl_b32 s7, s5, 19")
    srd(sc, sK, 68, off_lo=7, size=524288)
    srd(sc, sV, 70, off_lo=7, size=524288)
    I(f"s_mul_i32 s7, s6, {4*H_RT}")
    I(f"s_min_u32 s3, {s(sHH)}, 26")
    I(f"s_lshl_b32 s3, s3, 13")
    I("s_add_u32 s7, s7, s3")
    srd(sc, sH, 82, off_lo=7, size=3*H_RT + 8192, lit_off=H_OFF)
    I(f"s_lshl_b32 s7, s6, 21                  ; qt*4*O_RT")
    I("s_lshl_b32 s3, s5, 14")
    I("s_add_u32 s7, s7, s3")
    srd(sc, sO, 82, off_lo=7, size=3*O_RT + 16384, lit_off=O_OFF)
    I(f"s_mov_b32 {s(sPWO)}, s74\ns_mov_b32 {s(sPWO+1)}, s75\ns_mov_b32 {s(sPW2)}, s80\ns_mov_b32 {s(sPW2+1)}, s81")
    I(f"s_mul_i32 {s(sTW)}, s6, 5")
    I(f"s_add_u32 {s(sTW)}, {s(sTW)}, {s(sHH)}")
    I(f"s_sub_u32 {s(sTW)}, {s(sTW)}, 27")
    I(f"s_mov_b32 {s(sRETRY)}, 0")
    I(f"s_mov_b32 {s(sQS)}, {f32(math.log2(math.e)/math.sqrt(128.0))}")
    I(f"s_mov_b32 {s(sNL2E)}, {f32(-math.log2(math.e))}")
    I(f"v_mul_u32_u24 {v(vHOFF)}, {H_RT}, v1")
    I(f"v_add_u32 {v(vHOFF)}, {v(vHOFF)}, v3")
    I(f"v_lshl_add_u32 {v(vOOFF)}, v1, 19, v3")
    I("v_lshrrev_b32 v4, 4, v2                ; g")
    I("v_bfe_u32 v5, v2, 2, 2                 ; r'")
    I("v_and_b32 v6, 3, v2                    ; c")
    I("v_and_b32 v7, 15, v2                   ; q / kv")
    I("v_lshl_add_u32 v8, v4, 3, v5")
    I("v_lshlrev_b32 v8, 7, v8")
    I("v_lshl_add_u32 v8, v6, 3, v8")
    I(f"v_add_u32 v8, {RING}, v8")
    I("v_bfe_u32 v9, v2, 3, 2")
    for nb in range(4):
        I(f"v_xor_b32 v10, {nb}, v9")
        I(f"v_lshl_add_u32 {v(vAA+nb)}, v10, 5, v8")
    I("v_bfe_u32 v9, v2, 4, 1")
    I("v_bfe_u32 v10, v2, 5, 1")
    I("v_lshl_add_u32 v9, v9, 1, v10          ; pg")
    I("v_xor_b32 v9, v9, v7")
    I("v_lshlrev_b32 v8, 8, v7")
    for t in range(4):
        I(f"v_xor_b32 v10, {4*t}, v9")
        I(f"v_lshl_add_u32 {v(vKA+t)}, v10, 4, v8")
    I("v_lshrrev_b32 v9, 2, v2                ; 4g+r'")
    I("v_lshlrev_b32 v8, 8, v9")
    I("v_lshl_add_u32 v8, v6, 3, v8")
    I(f"v_add_u32 v8, {VBASE}, v8")
    I("v_and_b32 v9, 7, v9")
    for e in range(8):
        I(f"v_xor_b32 v10, {e}, v9")
        I(f"v_lshl_add_u32 {v(vVA+e)}, v10, 5, v8")
    I("v_lshrrev_b32 v9, 4, v0                ; 4w + l>>4")
    I("v_lshlrev_b32 v8, 8, v9")
    I("v_xor_b32 v10, v7, v9")
    I(f"v_lshl_add_u32 {v(vDK)}, v10, 4, v8")
    I("v_and_b32 v10, 7, v9")
    I("v_lshlrev_b32 v10, 1, v10")
    I("v_xor_b32 v10, v7, v10")
    I(f"v_lshl_add_u32 {v(vDV)}, v10, 4, v8")
    I(f"v_mov_b32 {v(vLN16)}, v3")

def kv_dma(which, buf, m, soff_text):
    base = (KBUF[buf] if which == "K" else VBASE + VBUF[buf]) + 4096*m
    return (f"s_add_u32 m0, {s(sW1024)}, {base}", soff_text,
            f"buffer_load_dwordx4 {v(vDK if which=='K' else vDV)}, {s(sK if which=='K' else sV,4)}, {s(sT)} offen lds")

def gemm(ffn):
    sc = Sec("gemm_ffn" if ffn else "gemm_q"); I = sc.I
    groups = ["G", "U", "Q0", "Q1"] if ffn else ["Q0", "Q1"]
    steps = [(c, u) for c in range(5) for u in groups]
    NS = len(steps); G = len(groups)
    def acc(u, nb, j):
        if u == "Q0": return v(16*nb + 4*j, 4)
        if u == "Q1": return v(64 + 16*nb + 4*j, 4)
        if u == "G": return a(16*nb + 4*j, 4)
        return a(64 + 16*nb + 4*j, 4)
    def wdma(t, m):
        c, u = steps[t]
        if u[0] == "Q": so = (128*c + 32*m)*8192 + (128 if u == "Q1" else 0); sr = sWQ; vo = vDQ
        else: so = (128*c + 32*m)*3456; sr = sW1 if u == "G" else sW3; vo = vDF
        return (f"s_add_u32 m0, {s(sW1024)}, {RING + 16384*(t%4) + 4096*m}", f"s_mov_b32 {s(sT)}, {so}",
                f"buffer_load_dwordx4 {v(vo)}, {s(sr,4)}, {s(sT)} offen lds", f"W{t}")
    def xld(c, j, ks):
        return f"buffer_load_dwordx4 {a(XF + 64*(c%2) + 16*j + 4*ks, 4)}, {v(vXOFF)}, {s(sXN,4)}, {s(sT2)} offen offset:{1024*ks}"
    def xso(c, j): return f"s_mov_b32 {s(sT2)}, {16384*c + 4096*j}"
    def aread(t, nb, ks, hf, buf):
        return f"ds_read_b64_tr_b16 {v(SS + 16*buf + 4*ks + 2*hf, 2)}, {v(vAA+nb)} offset:{16384*(t%4) + 4096*ks + 512*hf}"
    for m in range(4):
        x = wdma(0, m); I(x[0]); I(x[1]); I(x[2], x[3])
    for j in range(4):
        I(xso(0, j))
        for ks in range(4): I(xld(0, j, ks), "X0")
    for t in (1, 2, 3):
        for m in range(4):
            x = wdma(t, m); I(x[0]); I(x[1]); I(x[2], x[3])
    a_setup2(sc)
    I("s_waitcnt @vm:W0")
    I("s_barrier")
    for ks in range(4):
        for hf in range(2): I(aread(0, 0, ks, hf, 0), "A0")
    I("s_waitcnt @vm:X0 lgkmcnt(0)")
    stamp(sc, 1)
    g = Gaps()
    kvq = [("K", 0, m, 0) for m in range(8)] + [("K", 1, m, 32768) for m in range(8)] + [("V", 0, m, 0) for m in range(8)]
    if not ffn: kvq = []
    blk = 0
    for t, (c, u) in enumerate(steps):
        extra = []
        if c < 4:
            per = 16 // G
            i0 = (t % G) * per
            for i in range(i0, i0 + per):
                j, ks = divmod(i, 4)
                extra.append(((xso(c+1, j),) if ks == 0 else (), xld(c+1, j, ks), f"X{c+1}"))
        else:
            per = len(kvq) // G if kvq else 0
            for (wh, bf, m, so) in kvq[(t % G)*per:(t % G + 1)*per]:
                d = kv_dma(wh, bf, m, f"s_mov_b32 {s(sT)}, {so + 4096*m}")
                extra.append(((d[0], d[1]), d[2], "KV0"))
        for nb in range(4):
            buf = blk % 2
            k0 = len(g.m)
            for j in range(4):
                for ks in range(4):
                    d = acc(u, nb, j)
                    cc = "0" if (c == 0 and ks == 0) else d
                    g.add(f"{MF} {d}, {v(SS + 16*buf + 4*ks, 4)}, {a(XF + 64*(c%2) + 16*j + 4*ks, 4)}, {cc}")
            last = (t == NS-1 and nb == 3)
            if not last:
                nt, nnb = (t, nb+1) if nb < 3 else (t+1, 0)
                gp = [1, 2, 3, 4, 5, 6, 7, 8]
                if nb == 3:
                    g.S(k0, f"s_waitcnt @vm:W{t+1}")
                    g.S(k0, "s_barrier")
                n = 0
                for ks in range(4):
                    for hf in range(2):
                        g.M(k0 + gp[n], aread(nt, nnb, ks, hf, 1-buf), f"A{blk+1}"); n += 1
                w = "s_waitcnt lgkmcnt(0)"
                if nb == 3 and (t % G) == G-1: w += f" @vm:X{c+1}"
                g.S(k0 + 15, w)
            if nb == 3 and t + 4 < NS:
                for m in range(4):
                    x = wdma(t+4, m); kk = k0 + [2, 6, 10, 13][m]
                    g.S(kk-1, x[0]); g.S(kk, x[1]); g.M(kk, x[2], x[3])
            if nb < 3:
                mine = extra[nb::3] if False else extra[(len(extra)*nb)//3:(len(extra)*(nb+1))//3]
                slots = [10, 12, 14] if len(mine) <= 3 else None
                for n, (pre, ld, tg) in enumerate(mine):
                    kk = k0 + slots[n]
                    if len(pre) == 2: g.S(kk-1, pre[0]); g.S(kk, pre[1])
                    elif len(pre) == 1: g.S(kk, pre[0])
                    g.M(kk, ld, tg)
            blk += 1
    def qconv(grp):
        ops = []
        for sp in range(2):
            st = 2*grp + sp
            for j in range(4):
                A0 = 64*grp + 32*sp + 4*j; B0 = A0 + 16; D = QF + 16*j + 4*st
                for r in range(4): ops.append(f"v_mul_f32 {v(A0+r)}, {s(sQS)}, {v(A0+r)}")
                for r in range(4): ops.append(f"v_mul_f32 {v(B0+r)}, {s(sQS)}, {v(B0+r)}")
                ops.append(f"v_cvt_pk_bf16_f32 {v(D)}, {v(A0)}, {v(A0+1)}")
                ops.append(f"v_cvt_pk_bf16_f32 {v(D+2)}, {v(B0)}, {v(B0+1)}")
                ops.append(f"v_cvt_pk_bf16_f32 {v(D+1)}, {v(A0+2)}, {v(A0+3)}")
                ops.append(f"v_cvt_pk_bf16_f32 {v(D+3)}, {v(B0+2)}, {v(B0+3)}")
        for sp in range(2):
            st = 2*grp + sp
            for j in range(4):
                D = QF + 16*j + 4*st
                ops.append(f"v_permlane16_swap_b32 {v(D)}, {v(D+2)}")
                ops.append(f"v_permlane16_swap_b32 {v(D+1)}, {v(D+3)}")
        return ops
    def ffn_ep():
        ops = []
        T = QF
        n = 0
        for fs in range(2):
            for j in range(4):
                b = T + 28*(n % 2); n += 1
                gsrc = [16*(2*fs + hb) + 4*j + r for hb in range(2) for r in range(4)]
                for e in range(8): ops.append(f"v_accvgpr_read_b32 {v(b+e)}, {a(gsrc[e])}")
                for e in range(8): ops.append(f"v_mul_f32 {v(b+16+e)}, {s(sNL2E)}, {v(b+e)}")
                for e in range(8): ops.append(f"v_exp_f32 {v(b+16+e)}, {v(b+16+e)}")
                for e in range(8): ops.append(f"v_accvgpr_read_b32 {v(b+8+e)}, {a(64+gsrc[e])}")
                for e in range(8): ops.append(f"v_add_f32 {v(b+16+e)}, 1.0, {v(b+16+e)}")
                for e in range(8): ops.append(f"v_rcp_f32 {v(b+16+e)}, {v(b+16+e)}")
                for e in range(8): ops.append(f"v_mul_f32 {v(b+e)}, {v(b+e)}, {v(b+8+e)}")
                for e in range(8): ops.append(f"v_mul_f32 {v(b+e)}, {v(b+e)}, {v(b+16+e)}")
                for e in range(4): ops.append(f"v_cvt_pk_bf16_f32 {v(b+24+e)}, {v(b+2*e)}, {v(b+2*e+1)}")
                so = "0" if fs == 0 else s(sC4096)
                ops.append(f"buffer_store_dwordx4 {v(b+24,4)}, {v(vHOFF)}, {s(sH,4)}, {so} offen offset:{1024*j}")
        return ops
    n = len(g.m)
    if ffn:
        g.spread(ffn_ep(), n - 128 + 4, n)
        g.emit(sc)
        for o in qconv(0): I(o)
        for o in qconv(1): I(o)
    else:
        g.spread(qconv(0), n - 64 + 4, n)
        g.emit(sc)
        I("s_nop 7")
        for o in qconv(1): I(o)
    stamp(sc, 2)
    return sc

def transposer():
    sc = Sec("transp"); I = sc.I
    srd(sc, sWT, 82, size=8*WT_CT, lit_off=WT_OFF)
    T = 0
    I(f"s_mul_i32 s3, s4, 10240")
    I(f"v_add_u32 {v(T)}, s3, {v(vLN16)}")
    I(f"v_lshrrev_b32 {v(T+2)}, 6, {v(vLN16)}      ; 4g+r'")
    I(f"v_mul_u32_u24 {v(T+1)}, 1280, {v(T+2)}")
    I(f"v_bfe_u32 {v(T+2)}, {v(vLN16)}, 4, 2       ; c")
    I(f"v_lshl_add_u32 {v(T+1)}, {v(T+2)}, 3, {v(T+1)}")
    I(f"s_mul_i32 s7, s4, 320")
    I(f"v_add_u32 {v(T+1)}, s7, {v(T+1)}")
    I(f"s_mul_i32 s7, s4, {2*WT_CT}")
    I(f"v_add_u32 {v(T+2)}, s7, {v(vLN16)}")
    I(f"v_add_u32 {v(T+3)}, {WT_CT}, {v(T+2)}")
    I(f"v_add_u32 {v(T+4)}, 4096, {v(T+2)}")
    I(f"v_add_u32 {v(T+5)}, 4096, {v(T+3)}")
    I("s_barrier")
    def issue(r, lds):
        I(f"s_add_u32 {s(sU)}, {s(sTW)}, {40*r}")
        I(f"s_cmp_lt_u32 {s(sU)}, 54")
        I(f"s_cselect_b32 {s(sSRC)}, {s(sPW2)}, {s(sPWO)}")
        I(f"s_cselect_b32 {s(sSRC+1)}, {s(sPW2+1)}, {s(sPWO+1)}")
        I(f"s_cselect_b32 {s(sSRC+2)}, {1728*1280}, s67")
        I(f"s_cselect_b32 s7, 0, 54")
        I(f"s_mov_b32 {s(sSRC+3)}, 0x20000")
        I(f"s_sub_u32 s7, {s(sU)}, s7")
        I(f"s_mul_i32 s7, s7, 40960")
        for m in range(10):
            if m % 4 == 0:
                I(f"s_add_u32 m0, s3, {lds + 1024*m}")
                I(f"s_add_u32 {s(sT)}, s7, {1024*m}")
            I(f"buffer_load_dwordx4 {v(T)}, {s(sSRC,4)}, {s(sT)} offen offset:{1024*(m%4)} lds", f"T{r}")
    def proc(r, lds):
        I(f"s_add_u32 {s(sU)}, {s(sTW)}, {40*r}")
        I(f"s_mul_i32 {s(sT)}, {s(sU)}, 5120")
        if r == 4:
            I(f"s_cmp_ge_u32 {s(sU)}, 182")
            I(f"s_cbranch_scc1 L_tr_done")
        I(f"v_add_u32 {v(T+6)}, {lds}, {v(T+1)}")
        for half in range(2):
            for nbi in range(5):
                for hf in range(2):
                    I(f"ds_read_b64_tr_b16 {v(16 + 20*half + 4*nbi + 2*hf, 2)}, {v(T+6)} offset:{160*half + 32*nbi + 20480*hf}")
            I("s_waitcnt lgkmcnt(0)")
            for nbi in range(5):
                vo = v(T+2+half) if nbi < 4 else v(T+4+half)
                I(f"buffer_store_dwordx4 {v(16 + 20*half + 4*nbi, 4)}, {vo}, {s(sWT,4)}, {s(sT)} offen offset:{1024*(nbi%4)}")
    I(f"s_mov_b32 s67, {4096*1280}")
    for r in range(3): issue(r, 40960*r)
    for r in range(3):
        I(f"s_waitcnt @vm:T{r}")
        I("s_barrier")
        proc(r, 40960*r)
    I("s_waitcnt vmcnt(20)")
    I("s_barrier")
    for r in (3, 4): issue(r, 65536 + 40960*(r-3))
    for bf in range(2):
        for m in range(8):
            for x in kv_dma("K", bf, m, f"s_mov_b32 {s(sT)}, {32768*bf + 4096*m}"): I(x)
    for r in (3, 4):
        I(f"s_waitcnt @vm:T{r}")
        I("s_barrier")
        proc(r, 65536 + 40960*(r-3))
    I("L_tr_done:")
    I("s_barrier")
    for m in range(8):
        for x in kv_dma("V", 0, m, f"s_mov_b32 {s(sT)}, {4096*m}"): I(x)
    return sc

def kread(dst, buf, blk, t): return f"ds_read_b128 {a(dst + 4*t, 4)}, {v(vKA+t)} offset:{KBUF[buf] + 4096*blk}"
def vread(dst, buf, e, p, u): return f"ds_read_b64_tr_b16 {a(dst + 4*p + 2*u, 2)}, {v(vVA+e)} offset:{VBUF[buf] + 8192*p + 4096*u}"
def pcvt(P, blk, j, hf):
    return f"v_cvt_pk_bf16_f32 {v(P + 16*(blk//2) + 4*j + 2*(blk%2) + hf)}, {v(SS + 4*j + 2*hf)}, {v(SS + 4*j + 2*hf + 1)}"
def sexp(j, r): return f"v_exp_f32 {v(SS + 4*j + r)}, {v(SS + 4*j + r)}"
def qk_group(g, kf, czero=False):
    k0 = len(g.m)
    for j in range(4):
        for t in range(4):
            c = ("0" if czero else v(NEGM + 4*j, 4)) if t == 0 else v(SS + 4*j, 4)
            g.add(f"{MF} {v(SS + 4*j, 4)}, {a(kf + 4*t, 4)}, {v(QF + 16*j + 4*t, 4)}, {c}")
    return k0
def pv_group(g, e, vf, P, first):
    k0 = len(g.m)
    for j in range(4):
        for p in range(4):
            d = a(OA + 16*e + 4*j, 4)
            g.add(f"{MF} {d}, {a(vf + 4*p, 4)}, {v(P + 16*p + 4*j, 4)}, {'0' if (first and p == 0) else d}")
    return k0
def sum_group(g, P, first):
    k0 = len(g.m)
    for j in range(4):
        for p in range(4):
            d = a(LA + 4*j, 4)
            g.add(f"{MF} {d}, {a(ONES, 4)}, {v(P + 16*p + 4*j, 4)}, {'0' if (first and p == 0) else d}")
    return k0
def soft4(g, k, P, blk, j):
    for r in range(4): g.V(k + 2*r, sexp(j, r))
    g.V(k + 3, pcvt(P, blk, j, 0)); g.V(k + 7, pcvt(P, blk, j, 1))

def rowmax_finish(sc, src):
    I = sc.I
    T = vTMP
    for swap in ("v_permlane16_swap_b32", "v_permlane32_swap_b32"):
        for j in range(4): I(f"v_mov_b32 {v(T+j)}, {v(src+j)}")
        I("s_nop 0")
        for j in range(4): I(f"{swap} {v(src+j)}, {v(T+j)}")
        for j in range(4): I(f"v_max_f32 {v(src+j)}, {v(src+j)}, {v(T+j)}")
    for j in range(4):
        for r in range(4): I(f"v_sub_f32 {v(NEGM + 4*j + r)}, 0, {v(src+j)}")

def standin():
    sc = Sec("standin"); I = sc.I
    I("L_a_attn:")
    I(f"v_mov_b32 {v(vTMP)}, 0x3f803f80")
    for r in range(4): I(f"v_accvgpr_write_b32 {a(ONES+r)}, {v(vTMP)}")
    I("s_waitcnt vmcnt(0)")
    I("s_barrier")
    for t in range(4): I(kread(KF, 0, 0, t))
    I("s_waitcnt lgkmcnt(0)")
    g = Gaps(); qk_group(g, KF, czero=True); g.emit(sc)
    I("s_nop 7")
    for j in range(4):
        I(f"v_max3_f32 {v(P1+j)}, {v(SS+4*j)}, {v(SS+4*j+1)}, {v(SS+4*j+2)}")
        I(f"v_max_f32 {v(P1+j)}, {v(P1+j)}, {v(SS+4*j+3)}")
    rowmax_finish(sc, P1)
    return sc

def prephase():
    sc = Sec("pre"); I = sc.I
    I("L_a_pre:")
    I(f"s_mov_b32 {s(sKOFF)}, 32768")
    I(f"s_mov_b32 {s(sCNT)}, 7")
    g = Gaps()
    for blk in range(8):
        kf = KF if blk % 2 == 0 else VF
        k0 = qk_group(g, kf)
        if blk < 7:
            for t in range(4): g.M(k0 + 3 + (t//2)*4, kread(VF if blk % 2 == 0 else KF, 0, blk+1, t))
            g.S(k0 + 15, "s_waitcnt lgkmcnt(0)")
        else:
            g.S(k0, "s_barrier")
    for n in range(30):
        blk, j = divmod(n, 4)
        for r in range(4): g.V(4*n + 8 + r, sexp(j, r))
        g.V(4*n + 11, pcvt(P0, blk, j, 0)); g.V(4*n + 11, pcvt(P0, blk, j, 1))
    g.emit(sc)
    for r in range(4): I(sexp(2, r))
    I(pcvt(P0, 7, 2, 0)); I(pcvt(P0, 7, 2, 1))
    stamp(sc, 3)
    return sc

def period(par, first=False, name=None, loop_end=None):
    sc = Sec(name); I = sc.I
    Pc, Pn = (P0, P1) if par == 0 else (P1, P0)
    kb = 1 - par; vb = par
    g = Gaps()
    dm = []
    for m in range(8):
        dm.append(kv_dma("V", 1-par, m, f"s_add_u32 {s(sT)}, {s(sKOFF)}, {4096*m}"))
        dm.append(kv_dma("K", par, m, f"s_add_u32 {s(sT)}, {s(sKOFF)}, {32768 + 4096*m}"))
    def put_dma(k):
        if not dm: return
        d = dm.pop(0)
        g.S(k-1, d[0]); g.S(k, d[1]); g.M(k, d[2])
    k0 = sum_group(g, Pc, first)
    soft4(g, k0, Pc, 7, 3)
    for t in range(4): g.M(k0 + [1, 3, 5, 7][t], kread(KF, kb, 0, t))
    for k in (1, 5, 9, 13): put_dma(k0 + k)
    g.S(k0 + 15, "s_waitcnt lgkmcnt(0)")
    for blk in range(8):
        k0 = qk_group(g, KF)
        if blk > 0: soft4(g, k0, Pn, blk-1, 3)
        if blk == 0 and OPT["stamp"] >= 2 and not first:
            for n_, (vr, sr) in enumerate(((252, 84), (253, 86), (254, 88))):
                g.V(k0 + 2*n_, f"v_mov_b32_dpp v{vr}, v{vr} row_shr:1 row_mask:0xf bank_mask:0xf")
                g.V(k0 + 2*n_, f"v_writelane_b32 v{vr}, s{sr}, 0")
        soft4(g, k0 + 8, Pn, blk, 0)
        gp = [1, 1, 3, 5, 5, 7, 9, 9]
        for n in range(8): g.M(k0 + gp[n], vread(VF, vb, blk, n//2, n%2))
        put_dma(k0 + 13)
        g.S(k0 + 15, "s_waitcnt lgkmcnt(4)")
        k0 = pv_group(g, blk, VF, Pc, first)
        g.S(k0 + 1, "s_waitcnt lgkmcnt(0)")
        soft4(g, k0, Pn, blk, 1)
        soft4(g, k0 + 8, Pn, blk, 2)
        if blk < 7:
            for t in range(4): g.M(k0 + [1, 3, 5, 7][t], kread(KF, kb, blk+1, t))
            for k in (5, 9, 13): put_dma(k0 + k)
            g.S(k0 + 15, "s_waitcnt lgkmcnt(0)")
        else:
            if OPT["stamp"] >= 2: g.S(k0 + 9, "s_memtime s[84:85]")
            g.S(k0 + 9, "s_waitcnt vmcnt(0)")
            if OPT["stamp"] >= 2: g.S(k0 + 9, "s_memtime s[86:87]")
            g.S(k0 + 9, "s_barrier")
            if OPT["stamp"] >= 2: g.S(k0 + 9, "s_memtime s[88:89]")
            g.S(k0 + 11, f"s_add_u32 {s(sKOFF)}, {s(sKOFF)}, 32768")
            if loop_end:
                g.S(k0 + 13, f"s_sub_u32 {s(sCNT)}, {s(sCNT)}, 1")
                g.S(k0 + 14, f"s_cmp_lg_u32 {s(sCNT)}, 0")
    assert not dm
    g.emit(sc)
    if loop_end: I(f"s_cbranch_scc1 {loop_end}")
    return sc

def final():
    sc = Sec("final"); I = sc.I
    stamp(sc, 4)
    g = Gaps()
    Pc = P1; vb = 1
    k0 = sum_group(g, Pc, False)
    soft4(g, k0, Pc, 7, 3)
    gp = [1, 1, 3, 5, 5, 7, 9, 9]
    for n in range(8): g.M(k0 + gp[n], vread(VF, vb, 0, n//2, n%2))
    g.S(k0 + 15, "s_waitcnt lgkmcnt(0)")
    ks = []
    for e in range(8):
        vf = VF if e % 2 == 0 else KF
        k0 = pv_group(g, e, vf, Pc, False); ks.append(k0)
        if e < 7:
            for n in range(8): g.M(k0 + 1 + n, vread(KF if e % 2 == 0 else VF, vb, e+1, n//2, n%2))
            g.S(k0 + 15, "s_waitcnt lgkmcnt(0)")
    RI = vTMP
    ops = []
    for j in range(4): ops.append(f"v_accvgpr_read_b32 {v(SS+j)}, {a(LA + 4*j)}")
    for j in range(4): ops.append(f"v_rcp_f32 {v(RI+j)}, {v(SS+j)}")
    ops.append(f"v_add_f32 {v(SS+5)}, {v(SS)}, {v(SS+1)}")
    ops.append(f"v_add_f32 {v(SS+5)}, {v(SS+5)}, {v(SS+2)}")
    ops.append(f"v_add_f32 {v(SS+5)}, {v(SS+5)}, {v(SS+3)}")
    ops.append(f"v_cmp_ngt_f32 vcc, {f32(2.0**64)}, {v(SS+5)}")
    g.spread(ops, ks[0] + 9, ks[1] + 16)
    def oconv(st):
        ops = []
        for j in range(4):
            b = P0 + 12*j
            src = [OA + 16*(2*st + hb) + 4*j + r for hb in range(2) for r in range(4)]
            for e in range(8): ops.append(f"v_accvgpr_read_b32 {v(b+e)}, {a(src[e])}")
            for e in range(8): ops.append(f"v_mul_f32 {v(b+e)}, {v(b+e)}, {v(RI+j)}")
            for e in range(4): ops.append(f"v_cvt_pk_bf16_f32 {v(b+8+e)}, {v(b+2*e)}, {v(b+2*e+1)}")
            so = "0" if st == 0 else s(sC4096 + st - 1)
            ops.append(f"buffer_store_dwordx4 {v(b+8,4)}, {v(vOOFF)}, {s(sO,4)}, {so} offen offset:{1024*j}")
        return ops
    for st in range(3): g.spread(oconv(st), ks[2*st+2] + 4, ks[2*st+3] + 16)
    g.emit(sc)
    I("s_cmp_lg_u64 vcc, 0")
    I("s_cselect_b32 s3, 1, 0")
    I(f"v_mov_b32 {v(SS+6)}, s3")
    I(f"s_lshl_b32 s7, s4, 2")
    I(f"s_add_u32 s7, s7, {FLAGS}")
    I(f"v_mov_b32 {v(SS+7)}, s7")
    I(f"ds_write_b32 {v(SS+7)}, {v(SS+6)}")
    I(f"v_mov_b32 {v(SS+7)}, {FLAGS}")
    for o in oconv(3): I(o)
    I("s_waitcnt lgkmcnt(0)")
    I("s_barrier")
    I(f"ds_read_b128 {v(SS+8,4)}, {v(SS+7)}")
    I("s_waitcnt lgkmcnt(0)")
    I(f"v_or3_b32 {v(SS+8)}, {v(SS+8)}, {v(SS+9)}, {v(SS+10)}")
    I(f"v_or_b32 {v(SS+8)}, {v(SS+8)}, {v(SS+11)}")
    I("s_nop 0")
    I(f"v_readfirstlane_b32 s3, {v(SS+8)}")
    I("s_nop 3")
    I(f"s_andn2_b32 s3, s3, {s(sRETRY)}")
    I("s_cmp_lg_u32 s3, 0")
    I("s_cbranch_scc1 L_a_truemax")
    if OPT["stamp"]:
        stamp(sc, 5)
        I("s_waitcnt vmcnt(0)")
        stamp(sc, 6)
        srd(sc, sSTP, 82, size=1024*256, lit_off=ST_OFF)
        I(f"s_lshl_b32 s3, s2, 10")
        I(f"s_lshl_b32 s7, s4, 8")
        I("s_add_u32 s3, s3, s7")
        I(f"v_lshrrev_b32 v251, 2, {v(vLN16)}")
        I(f"buffer_store_dword v255, v251, {s(sSTP,4)}, s3 offen")
        if OPT["stamp"] >= 2:
            for n_ in range(3):
                srd(sc, sSTP, 82, size=1024*256, lit_off=ST_OFF + 0x80000 + 0x40000*n_)
                I(f"buffer_store_dword v{252+n_}, v251, {s(sSTP,4)}, s3 offen")
    I("L_a_end:")
    I("s_endpgm")
    return sc

def truemax():
    s1 = Sec("tm_a"); I = s1.I
    MX = P1
    I("L_a_truemax:")
    I(f"s_mov_b32 {s(sRETRY)}, 1")
    for j in range(4): I(f"v_mov_b32 {v(MX+j)}, 0xff800000")
    I(f"s_mov_b32 {s(sKOFF)}, 0")
    s2 = Sec("tm_b"); I = s2.I
    I("L_tm_tile:")
    I("s_barrier")
    for m in range(8):
        for x in kv_dma("K", 0, m, f"s_add_u32 {s(sT)}, {s(sKOFF)}, {4096*m}"): I(x)
    I("s_waitcnt vmcnt(0)")
    I("s_barrier")
    for t in range(4): I(f"v_mov_b32 {v(P0+t)}, {v(vKA+t)}")
    I(f"s_mov_b32 {s(sCNT)}, 8")
    s3 = Sec("tm_c"); I = s3.I
    I("L_tm_blk:")
    for t in range(4): I(f"ds_read_b128 {a(KF + 4*t, 4)}, {v(P0+t)}")
    for t in range(4): I(f"v_add_u32 {v(P0+t)}, 4096, {v(P0+t)}")
    I("s_waitcnt lgkmcnt(0)")
    g = Gaps(); qk_group(g, KF, czero=True); g.emit(s3)
    I("s_nop 7")
    for j in range(4):
        I(f"v_max3_f32 {v(MX+j)}, {v(MX+j)}, {v(SS+4*j)}, {v(SS+4*j+1)}")
        I(f"v_max3_f32 {v(MX+j)}, {v(MX+j)}, {v(SS+4*j+2)}, {v(SS+4*j+3)}")
    I(f"s_sub_u32 {s(sCNT)}, {s(sCNT)}, 1")
    I(f"s_cmp_lg_u32 {s(sCNT)}, 0")
    I("s_cbranch_scc1 L_tm_blk")
    s4 = Sec("tm_d"); I = s4.I
    I(f"s_add_u32 {s(sKOFF)}, {s(sKOFF)}, 32768")
    I(f"s_cmp_lt_u32 {s(sKOFF)}, 524288")
    I("s_cbranch_scc1 L_tm_tile")
    s5 = Sec("tm_e"); I = s5.I
    I("s_barrier")
    for bf in range(2):
        for m in range(8):
            for x in kv_dma("K", bf, m, f"s_mov_b32 {s(sT)}, {32768*bf + 4096*m}"): I(x)
    for m in range(8):
        for x in kv_dma("V", 0, m, f"s_mov_b32 {s(sT)}, {4096*m}"): I(x)
    rowmax_finish(s5, MX)
    I("s_waitcnt vmcnt(0)")
    I("s_barrier")
    for t in range(4): I(kread(KF, 0, 0, t))
    I("s_waitcnt lgkmcnt(0)")
    I("s_branch L_a_pre")
    return [s1, s2, s3, s4, s5]

def gen_attn():
    st = a_setup()
    st.I(f"s_cmp_ge_u32 {s(sHH)}, 27")
    st.I("s_cbranch_scc1 L_a_noffn")
    g1 = gemm(True)
    si = standin(); pre = prephase()
    p0 = period(0, first=True, name="p0")
    lp = Sec("lp"); lp.I(".p2align 3"); lp.I("L_a_loop:")
    p1 = period(1, name="p1"); p2 = period(0, name="p2", loop_end="L_a_loop")
    fin = final()
    tm = truemax()
    nf = Sec("nf"); nf.I("L_a_noffn:")
    g2 = gemm(False); tr = transposer(); tr.I("s_branch L_a_attn")
    resolve_waits([g1]); resolve_waits([g2, tr])
    order = [st, g1, si, pre, p0, lp, p1, p2, fin] + tm + [nf, g2, tr]
    main = [si, pre, p0, p1, p2, p1, p2, fin]
    traces = [[st, g1] + main, [st, g2, tr] + main,
              [fin, tm[0], tm[1], tm[2], tm[2], tm[3], tm[1], tm[2], tm[3], tm[4], pre, p0]]
    for x in (g1, g2, si, pre, p0, p1, p2, fin): print(f"  est {x.name}: cycles={est_cycles(x)}", file=sys.stderr)
    return order, traces, kdesc("attn_kernel", 512, 256, 96)

def gen_out():
    sc = Sec("out"); I = sc.I
    sHB, sOB, sW2, sWO, sX, sOUT = 8, 12, 16, 20, 24, 28
    sA, sB = 32, 33
    NST = 7
    def frag(stage, f):
        n = 9*stage + f
        return v(4*n, 4) if n < 56 else a(160 + 4*(n-56), 4)
    vB = 224
    vA = 228
    vXO = 230; vWR = 231
    vRD = 234; XR = 236
    GA = 188
    I("out_kernel:")
    I("s_cmp_ge_u32 s2, 256")
    I("s_cbranch_scc1 L_o_end")
    I("s_load_dwordx2 s[4:5], s[0:1], 0       ; x")
    I("s_load_dwordx2 s[6:7], s[0:1], 72      ; out")
    I("s_load_dwordx2 s[34:35], s[0:1], 88    ; ws")
    if OPT["stamp"]: I("v_mov_b32 v255, 0")
    I("v_lshrrev_b32 v246, 6, v0              ; w")
    I("v_and_b32 v247, 63, v0")
    I("v_lshlrev_b32 v248, 4, v247            ; 16*lane")
    I("s_bfe_u32 s36, s2, 0x20001")
    I("s_lshl_b32 s36, s36, 3")
    I("s_bfe_u32 s37, s2, 0x30003")
    I("s_add_u32 s36, s36, s37                ; rt")
    I("s_and_b32 s37, s2, 1")
    I("s_lshl_b32 s37, s37, 2")
    I("s_lshr_b32 s38, s2, 6")
    I("s_add_u32 s37, s37, s38                ; ct")
    if OPT["bexp"] == 1: I("s_mov_b32 s36, 0\ns_mov_b32 s37, 0")
    if OPT["bexp"] == 2: I("s_mov_b32 s37, 0")
    if OPT["bexp"] == 3: I("s_mov_b32 s36, 0")
    if OPT["bexp"] == 4: I("s_and_b32 s36, s2, 7\ns_lshl_b32 s36, s36, 2\ns_bfe_u32 s37, s2, 0x20003\ns_add_u32 s36, s36, s37\ns_lshr_b32 s37, s2, 5")
    if OPT["bexp"] == 5: I("s_and_b32 s36, s2, 7\ns_and_b32 s37, s2, 7")
    I("v_lshl_add_u32 v249, v246, 12, v248")
    for jj in range(4):
        I(f"v_add_u32 v250, {jj}, v246")
        I("v_and_b32 v250, 3, v250")
        I(f"v_lshl_add_u32 {v(vB+jj)}, v250, 10, v249")
        if jj:
            I(f"v_mul_u32_u24 v250, 30720, v250")
            I(f"v_add_u32 v250, {5120*(jj-1)}, v250")
            I(f"v_add_u32 {v(vWR+jj-1)}, v250, v248")
    I(f"v_mul_u32_u24 {v(vA)}, 5120, v246")
    I(f"v_add_u32 {v(vA)}, {v(vA)}, v248")
    I(f"v_add_u32 {v(vA+1)}, 4096, {v(vA)}")
    I("s_waitcnt lgkmcnt(0)")
    I(f"s_mul_i32 s38, s36, {H_RT}")
    srd(sc, sHB, 34, off_lo=38, size=H_RT, lit_off=H_OFF)
    I(f"s_mul_i32 s38, s37, {WT_CT}")
    srd(sc, sW2, 34, off_lo=38, size=54*5120, lit_off=WT_OFF)
    srd(sc, sWO, 34, off_lo=38, size=128*5120, lit_off=WT_OFF + 54*5120)
    I(f"s_lshl_b32 s38, s36, 19")
    srd(sc, sOB, 34, off_lo=38, size=O_RT, lit_off=O_OFF)
    stamp(sc, 0)
    NS = 46
    def loads(n):
        i = n if n < 14 else n - 14
        sb, sa = (sHB, sW2) if n < 14 else (sOB, sWO)
        st = n % NST
        L = [(f"s_mov_b32 {s(sA)}, {20480*i}", None), (f"s_mov_b32 {s(sB)}, {16384*i}", None)]
        order = [0, 5, 1, 6, 2, 7, 3, 8, 4]
        for f in order:
            if f < 5:
                vo = v(vA) if f < 4 else v(vA+1)
                L.append((f"buffer_load_dwordx4 {frag(st, f)}, {vo}, {s(sa,4)}, {s(sA)} offen offset:{1024*(f%4)}", f"S{n}"))
            else:
                L.append((f"buffer_load_dwordx4 {frag(st, f)}, {v(vB+f-5)}, {s(sb,4)}, {s(sB)} offen", f"S{n}"))
        return L
    for n in range(NST-1):
        for t, tg in loads(n): I(t, tg)
    I(f"s_mul_i32 s38, s36, 81920")
    I(f"s_mul_i32 s39, s37, 160")
    I("s_add_u32 s38, s38, s39")
    srd(sc, sX, 4, off_lo=38, size=f"s_sub_u32 {s(sX+2)}, {2048*1280}, s38")
    srd(sc, sOUT, 6, off_lo=38, size=f"s_sub_u32 {s(sOUT+2)}, {2048*1280}, s38")
    I("v_and_b32 v250, 15, v247")
    I("v_lshl_add_u32 v250, v246, 4, v250     ; 16w + q")
    I(f"v_mul_u32_u24 {v(vXO)}, 1280, v250")
    I("v_lshrrev_b32 v250, 4, v247")
    I(f"v_lshl_add_u32 {v(vXO)}, v250, 3, {v(vXO)}")
    I(f"v_mul_u32_u24 {v(vRD)}, 30720, v246")
    I(f"v_add_u32 {v(vRD)}, {v(vRD)}, v248")
    I(f"s_mov_b32 s40, {f32(-math.log2(math.e))}")
    def accr(set_, nbi, jj): return 80*set_ + 20*jj + 4*nbi
    g = Gaps()
    def redwrite(set_):
        return [f"ds_write_b128 {v(vWR+jj-1)}, {a(accr(set_, nbi, jj), 4)} offset:{15360*set_ + 1024*nbi}" for jj in (1, 2, 3) for nbi in range(5)]
    T = 246
    kstart = []
    I("s_waitcnt @vm:S0")
    stamp(sc, 1)
    for n in range(NS):
        set_ = 0 if n < 14 else 1
        st = n % NST
        k0 = len(g.m); kstart.append(k0)
        for jj in range(4):
            for nbi in range(5):
                d = a(accr(set_, nbi, jj), 4)
                g.add(f"{MF} {d}, {frag(st, nbi)}, {frag(st, 5+jj)}, {'0' if n in (0, 14) else d}")
        if n + NST - 1 < NS:
            L = loads(n + NST - 1)
            g.S(k0, L[0][0]); g.S(k0 + 1, L[1][0])
            for m, (t, tg) in enumerate(L[2:]): g.M(k0 + 1 + 2*m, t, tg)
        if n == 30:
            for nbi in range(5): g.M(k0 + 2*nbi, f"buffer_load_dwordx2 {v(XR+2*nbi,2)}, {v(vXO)}, {s(sX,4)}, 0 offen offset:{32*nbi}", "XT")
        if n + 1 < NS: g.S(k0 + 19, f"s_waitcnt @vm:S{n+1}")
    for m, t in enumerate(redwrite(0)): g.M(kstart[15 + m//8] + 2*(m % 8), t)
    g.S(kstart[18], "s_waitcnt lgkmcnt(0)"); g.S(kstart[18], "s_barrier")
    for nbi in range(5):
        k0 = kstart[19 + nbi]
        for sr in range(3): g.M(k0 + 2*sr, f"ds_read_b128 {a(208 + 4*sr, 4)}, {v(vRD)} offset:{5120*sr + 1024*nbi}")
        g.S(k0 + 10, "s_waitcnt lgkmcnt(0)")
        ops = []
        for r in range(4): ops.append(f"v_accvgpr_read_b32 {v(T+r)}, {a(accr(0, nbi, 0) + r)}")
        for sr in range(3):
            for r in range(4): ops.append(f"v_accvgpr_read_b32 {v(T+4+r)}, {a(208 + 4*sr + r)}")
            for r in range(4): ops.append(f"v_add_f32 {v(T+r)}, {v(T+r)}, {v(T+4+r)}")
        for r in range(4): ops.append(f"v_mul_f32 {v(T+4+r)}, s40, {v(T+r)}")
        for r in range(4): ops.append(f"v_exp_f32 {v(T+4+r)}, {v(T+4+r)}")
        for r in range(4): ops.append(f"v_add_f32 {v(T+4+r)}, 1.0, {v(T+4+r)}")
        for r in range(4): ops.append(f"v_rcp_f32 {v(T+4+r)}, {v(T+4+r)}")
        for r in range(4): ops.append(f"v_mul_f32 {v(T+r)}, {v(T+r)}, {v(T+4+r)}")
        for r in range(4): ops.append(f"v_accvgpr_write_b32 {a(GA + 4*nbi + r)}, {v(T+r)}")
        g.spread(ops, k0 + 10, k0 + 20)
    g.emit(sc)
    stamp(sc, 2)
    I("s_nop 7")
    for t in redwrite(1): I(t)
    for i in range(20): I(f"v_accvgpr_read_b32 {v(i)}, {a(accr(1, 0, 0) + i)}")
    for i in range(20): I(f"v_accvgpr_read_b32 {v(20+i)}, {a(GA + i)}")
    I("s_mov_b32 s41, 0xffff0000")
    I("s_waitcnt @vm:XT")
    for nbi in range(5):
        for h2 in range(2):
            I(f"v_lshlrev_b32 {v(40 + 4*nbi + 2*h2)}, 16, {v(XR + 2*nbi + h2)}")
            I(f"v_and_b32 {v(41 + 4*nbi + 2*h2)}, s41, {v(XR + 2*nbi + h2)}")
    I("s_waitcnt lgkmcnt(0)")
    I("s_barrier")
    for nbi in range(5):
        for sr in range(3): I(f"ds_read_b128 {v(64 + 12*nbi + 4*sr, 4)}, {v(vRD)} offset:{15360 + 5120*sr + 1024*nbi}", f"R{nbi}")
    for nbi in range(5):
        I(f"s_waitcnt @lg:R{nbi}")
        for sr in range(3):
            for h2 in range(2):
                I(f"v_pk_add_f32 {v(4*nbi + 2*h2, 2)}, {v(4*nbi + 2*h2, 2)}, {v(64 + 12*nbi + 4*sr + 2*h2, 2)}")
        for h2 in range(2):
            I(f"v_pk_fma_f32 {v(4*nbi + 2*h2, 2)}, {v(4*nbi + 2*h2, 2)}, {v(20 + 4*nbi + 2*h2, 2)}, {v(40 + 4*nbi + 2*h2, 2)}")
        for h2 in range(2):
            I(f"v_cvt_pk_bf16_f32 {v(XR + 2*nbi + h2)}, {v(4*nbi + 2*h2)}, {v(4*nbi + 2*h2 + 1)}")
        I(f"buffer_store_dwordx2 {v(XR+2*nbi,2)}, {v(vXO)}, {s(sOUT,4)}, 0 offen offset:{32*nbi}")
    if OPT["stamp"]:
        stamp(sc, 3)
        I("s_waitcnt vmcnt(0)")
        stamp(sc, 4)
        srd(sc, sSTP, 34, size=1024*256, lit_off=ST_OFF + 0x40000)
        I(f"s_lshl_b32 s3, s2, 10")
        I(f"v_lshrrev_b32 v254, 12, {v(vB)}")
        I(f"v_lshlrev_b32 v254, 8, v254")
        I(f"v_bfe_u32 v253, {v(vB)}, 4, 6")
        I(f"v_lshl_add_u32 v254, v253, 2, v254")
        I(f"buffer_store_dword v255, v254, {s(sSTP,4)}, s3 offen")
    I("L_o_end:")
    I("s_endpgm")
    resolve_waits([sc])
    print(f"  est out: cycles={est_cycles(sc)}", file=sys.stderr)
    return [sc], [[sc]], kdesc("out_kernel", 512, 256, 96)

def main():
    ref = open(f"cdna_kernels/{NAME}.s.ref").read().split("\n")
    hdr = [l for l in ref if l.startswith(";") and "@launch" not in l and "Override launch" not in l and "grid=ceil" not in l]
    out = hdr[:]
    out.append("; @launch kernel=ln_kernel grid=(256,1,1) block=(128,1,1) lds=0")
    out.append("; @launch kernel=attn_kernel grid=(256,1,1) block=(256,1,1) lds=163840")
    for _ in range(OPT["brep"]): out.append("; @launch kernel=out_kernel grid=(256,1,1) block=(256,1,1) lds=122880")
    out.append('.amdgcn_target "amdgcn-amd-amdhsa--gfx950"')
    out.append(".text")
    kds = []; nerr = 0
    for nm, fn in (("ln_kernel", gen_ln), ("attn_kernel", gen_attn), ("out_kernel", gen_out)):
        secs, traces, kd = fn()
        out.append(f".globl {nm}\n.p2align 8\n.type {nm},@function")
        for sc in secs: out.append(sc.text())
        kds.append(kd)
        for n, tr in enumerate(traces):
            errs = check_trace(tr, f"{nm}/{n}")
            for e in errs[:20]: print(e, file=sys.stderr)
            nerr += len(errs)
    out.append('.section .rodata,"a"')
    out += kds
    open(sys.argv[1], "w").write("\n".join(out) + "\n")
    print(f"hazard problems: {nerr}", file=sys.stderr)
main()
```

```python
import sys, math, struct
from asmlib import *

NAME = "recurrent_scan__gqa_block_cached__glu_gated_swiglu__prompt"
OPT = dict(stamp=0, bexp=0, brep=1, abl=0, pfc=0, pfw=0, pfkv=0, dmaspread=0, xsched=0)
for x in sys.argv[2:]:
    k, val = x.split("="); OPT[k] = int(val)

def f32(x): return "0x%08x" % struct.unpack("<I", struct.pack("<f", x))[0]

XN_OFF = 0x0000000
H_OFF  = 0x0300000
O_OFF  = 0x0A00000
WT_OFF = 0x1A00000
ST_OFF = 0x2400000
H_RT = 54 * 4096; O_RT = 128 * 4096; WT_CT = 182 * 5120
MF = "v_mfma_f32_16x16x32_bf16"

def srd(sec, d, base, off_lo=None, size=None, lit_off=0):
    if lit_off:
        sec.I(f"s_add_u32 {s(d)}, {s(base)}, {hex(lit_off)}")
        sec.I(f"s_addc_u32 {s(d+1)}, {s(base+1)}, 0")
        b = d
    else: b = base
    if off_lo is not None:
        sec.I(f"s_add_u32 {s(d)}, {s(b)}, {s(off_lo)}")
        sec.I(f"s_addc_u32 {s(d+1)}, {s(b+1)}, 0")
    elif not lit_off:
        sec.I(f"s_mov_b32 {s(d)}, {s(base)}")
        sec.I(f"s_mov_b32 {s(d+1)}, {s(base+1)}")
    if isinstance(size, int): sec.I(f"s_mov_b32 {s(d+2)}, {hex(size)}")
    else: sec.I(size)
    sec.I(f"s_mov_b32 {s(d+3)}, 0x20000")

def gen_ln():
    sc = Sec("ln"); I = sc.I
    I("ln_kernel:")
    I("s_cmp_ge_u32 s2, 256")
    I("s_cbranch_scc1 L_ln_end")
    I("s_load_dwordx2 s[4:5], s[0:1], 0")
    I("s_load_dwordx2 s[6:7], s[0:1], 88")
    if OPT["pfw"]:
        I("s_load_dwordx4 s[36:39], s[0:1], 8      ; K, V")
        I("s_load_dwordx2 s[40:41], s[0:1], 24     ; wq")
        I("s_load_dwordx4 s[44:47], s[0:1], 48     ; w1, w3")
    I("v_lshrrev_b32 v1, 4, v0")
    I("s_lshl_b32 s3, s2, 3")
    I("v_add_u32 v1, s3, v1")
    I("v_and_b32 v2, 15, v0             ; p")
    I("v_mul_u32_u24 v3, 1280, v1")
    I("v_lshl_add_u32 v3, v2, 4, v3")
    I("s_waitcnt lgkmcnt(0)")
    srd(sc, 8, 4, size=2048*1280)
    srd(sc, 12, 6, size=2048*1280, lit_off=XN_OFF)
    for i in range(5):
        I(f"buffer_load_dwordx4 {v(8+4*i,4)}, v3, s[8:11], 0 offen offset:{256*i}")
    npf = 0
    I("s_lshr_b32 s18, s2, 3")
    I("s_and_b32 s19, s2, 7")
    if OPT["pfc"]:
        I("s_getpc_b64 s[20:21]")
        I("L_ln_pc:")
        I("s_add_u32 s20, s20, attn_kernel-L_ln_pc")
        I("s_addc_u32 s21, s21, 0")
        I("s_mov_b32 s22, L_code_end-attn_kernel")
        I("s_mov_b32 s23, 0x20000")
        I("s_lshl_b32 s17, s18, 12")
        I("v_and_b32 v72, 31, v0")
        I("v_lshlrev_b32 v72, 7, v72")
        I("buffer_load_dword v73, v72, s[20:23], s17 offen"); npf += 1
    if OPT["pfw"]:
        srd(sc, 24, 40, size=640*8192)
        srd(sc, 28, 44, size=640*3456)
        srd(sc, 32, 46, size=640*3456)
        I("s_mul_i32 s17, s18, 20*8192")
        I("s_lshl_b32 s16, s19, 10")
        I("s_add_u32 s17, s17, s16")
        I("v_lshrrev_b32 v72, 3, v0")
        I("v_lshlrev_b32 v72, 13, v72")
        I("v_and_b32 v74, 7, v0")
        I("v_lshl_add_u32 v72, v74, 7, v72")
        I("buffer_load_dword v75, v72, s[24:27], s17 offen"); npf += 1
        I("v_and_b32 v72, 0x7fff, v72")
        I("s_add_u32 s17, s17, 16*8192")
        I("buffer_load_dword v76, v72, s[24:27], s17 offen"); npf += 1
        I("v_lshrrev_b32 v72, 2, v0")
        I("v_min_u32 v72, 19, v72")
        I("v_mul_u32_u24 v72, 3456, v72")
        I("v_and_b32 v74, 3, v0")
        I("v_lshl_add_u32 v72, v74, 10, v72")
        I("s_mul_i32 s17, s18, 20*3456")
        I("s_lshl_b32 s16, s19, 7")
        I("s_add_u32 s17, s17, s16")
        I("buffer_load_dword v77, v72, s[28:31], s17 offen"); npf += 1
        I("buffer_load_dword v78, v72, s[32:35], s17 offen"); npf += 1
        if OPT["pfw"] > 1:
            srd(sc, 24, 36, size=32*524288)
            srd(sc, 28, 38, size=32*524288)
            I("s_and_b32 s16, s18, 3")
            I("s_lshl_b32 s17, s19, 2")
            I("s_add_u32 s16, s16, s17")
            I("s_lshl_b32 s16, s16, 19")
            I("s_lshr_b32 s17, s18, 2")
            I("s_lshl_b32 s17, s17, 13")
            I("s_add_u32 s16, s16, s17")
            I("v_and_b32 v72, 63, v0")
            I("v_lshlrev_b32 v72, 7, v72")
            I("buffer_load_dword v79, v72, s[24:27], s16 offen"); npf += 1
            I("buffer_load_dword v80, v72, s[28:31], s16 offen"); npf += 1
    I("v_lshrrev_b32 v4, 6, v1")
    I("v_mul_u32_u24 v4, 81920, v4")
    I("v_bfe_u32 v5, v1, 4, 2")
    I("v_lshl_add_u32 v4, v5, 12, v4")
    I("v_and_b32 v5, 15, v1")
    I("v_lshl_add_u32 v4, v5, 4, v4")
    I("v_lshl_add_u32 v4, v2, 8, v4     ; p*256 == (p>>2)*1024 + (p&3)*256")
    I("s_mov_b32 s16, 0xffff0000")
    for i in range(5):
        I(f"s_waitcnt vmcnt({4-i+npf})")
        for r in range(4):
            d = 4*i + r
            I(f"v_lshlrev_b32 {v(32+2*d)}, 16, {v(8+d)}")
            I(f"v_and_b32 {v(33+2*d)}, s16, {v(8+d)}")
    I("v_pk_add_f32 v[6:7], v[32:33], v[34:35]")
    for d in range(2, 20): I(f"v_pk_add_f32 v[6:7], v[6:7], {v(32+2*d,2)}")
    I("v_add_f32 v6, v6, v7")
    def rowsum(r):
        for sh in (8, 4, 2, 1):
            I("s_nop 1")
            I(f"v_add_f32_dpp {v(r)}, {v(r)}, {v(r)} row_ror:{sh} row_mask:0xf bank_mask:0xf")
    rowsum(6)
    I(f"v_mul_f32 v6, {f32(-1.0/640)}, v6     ; -mean")
    I("v_mov_b32 v7, v6")
    for d in range(20): I(f"v_pk_add_f32 {v(32+2*d,2)}, {v(32+2*d,2)}, v[6:7]")
    I("v_pk_mul_f32 v[6:7], v[32:33], v[32:33]")
    for d in range(1, 20): I(f"v_pk_fma_f32 v[6:7], {v(32+2*d,2)}, {v(32+2*d,2)}, v[6:7]")
    I("v_add_f32 v6, v6, v7")
    rowsum(6)
    I(f"v_mov_b32 v7, {f32(1e-5)}")
    I(f"v_fmac_f32 v7, {f32(1.0/640)}, v6")
    I("v_rsq_f32 v6, v7")
    I("s_nop 0")
    I("v_mov_b32 v7, v6")
    for d in range(20): I(f"v_pk_mul_f32 {v(32+2*d,2)}, {v(32+2*d,2)}, v[6:7]")
    for i in range(5):
        for r in range(4):
            d = 4*i + r
            I(f"v_cvt_pk_bf16_f32 {v(8+d)}, {v(32+2*d)}, {v(33+2*d)}")
        I(f"s_mov_b32 s17, {16384*i}")
        I(f"buffer_store_dwordx4 {v(8+4*i,4)}, v4, s[12:15], s17 offen")
    I("L_ln_end:")
    I("s_endpgm")
    return [sc], [[sc]], kdesc("ln_kernel", 88, 88, 64)

sK, sV, sWQ, sW1, sW3, sXN, sH, sO = 8, 12, 16, 20, 24, 28, 32, 36
sSRC, sWT = 20, 24
sW1024 = 40; sT = 41; sKOFF = 42; sCNT = 43; sHH = 44; sC4096 = 45
sRETRY = 48; sTW = 49; sU = 50; sQS = 51; sNL2E = 52; sM0K = 53; sM0V = 54; sT2 = 55
sPWO, sPW2 = 56, 58
sSTP = 60
P0, P1, QF, SS, NEGM = 0, 64, 128, 192, 208
vKA, vVA, vDK, vDV = 224, 228, 236, 237
vLN16 = 238
vXOFF, vDQ, vDF, vAA = 239, 240, 241, 242
vOOFF, vHOFF = 246, 247
vPF = 252; vPFD = 253
vTMP = 248
OA, LA, KF, VF, ONES = 0, 128, 144, 160, 176
XF = 128
RING = 98304
KBUF = [0, 32768]; VBASE = 65536; VBUF = [0, 32768]
FLAGS = 131072

def stamp(sec, idx):
    if not OPT["stamp"]: return
    sec.I(f"s_memtime s[64:65]")
    sec.I(f"s_waitcnt lgkmcnt(0)")
    sec.I(f"v_writelane_b32 v255, s64, {idx}")
    sec.I(f"s_memrealtime s[64:65]")
    sec.I(f"s_waitcnt lgkmcnt(0)")
    sec.I(f"v_writelane_b32 v255, s64, {idx+32}")

def a_setup():
    sc = Sec("a_setup"); I = sc.I
    I("attn_kernel:")
    I("s_cmp_ge_u32 s2, 256")
    I("s_cbranch_scc1 L_a_end")
    I("s_load_dwordx4 s[68:71], s[0:1], 8      ; K, V")
    I("s_load_dwordx4 s[72:75], s[0:1], 24")
    I("s_load_dwordx4 s[76:79], s[0:1], 48     ; w1, w3")
    I("s_load_dwordx2 s[80:81], s[0:1], 64     ; w2")
    I("s_load_dwordx2 s[82:83], s[0:1], 88     ; ws")
    if OPT["stamp"]: I("v_mov_b32 v255, 0")
    I("v_lshrrev_b32 v1, 6, v0")
    I("v_and_b32 v2, 63, v0                   ; lane")
    I(f"v_readfirstlane_b32 s4, v1")
    I("s_and_b32 s5, s2, 7")
    I("s_lshl_b32 s5, s5, 2")
    I("s_bfe_u32 s6, s2, 0x20003")
    I("s_add_u32 s5, s5, s6                   ; head")
    I("s_lshr_b32 s6, s2, 5                   ; q tile")
    I(f"s_and_b32 {s(sHH)}, s2, 31")
    I(f"s_lshl_b32 {s(sW1024)}, s4, 10")
    I(f"v_lshlrev_b32 v3, 4, v2                ; 16*lane")
    I(f"v_mul_u32_u24 {v(vXOFF)}, 81920, v1")
    I(f"v_add_u32 {v(vXOFF)}, {v(vXOFF)}, v3")
    I("v_lshrrev_b32 v4, 3, v0                ; 8w + l>>3")
    I("v_bfe_u32 v5, v0, 4, 1")
    I("v_bfe_u32 v6, v0, 6, 1")
    I("v_lshl_add_u32 v5, v6, 1, v5")
    I("v_lshlrev_b32 v5, 1, v5")
    I("v_and_b32 v6, 7, v0")
    I("v_xor_b32 v5, v5, v6")
    I("v_lshlrev_b32 v5, 4, v5")
    I(f"v_lshl_add_u32 {v(vDQ)}, v4, 13, v5")
    I(f"v_mul_u32_u24 {v(vDF)}, 3456, v4")
    I(f"v_add_u32 {v(vDF)}, {v(vDF)}, v5")
    I("s_waitcnt lgkmcnt(0)")
    I("s_mul_i32 s7, s6, 4*81920")
    srd(sc, sXN, 82, off_lo=7, size=4*81920, lit_off=XN_OFF)
    I("s_lshl_b32 s7, s5, 8")
    srd(sc, sWQ, 72, off_lo=7, size=f"s_sub_u32 {s(sWQ+2)}, {640*8192}, s7")
    I(f"s_min_u32 s7, {s(sHH)}, 26")
    I(f"s_lshl_b32 s7, s7, 7")
    srd(sc, sW1, 76, off_lo=7, size=f"s_sub_u32 {s(sW1+2)}, {640*3456}, s7")
    srd(sc, sW3, 78, off_lo=7, size=f"s_sub_u32 {s(sW3+2)}, {640*3456}, s7")
    I(f"s_mov_b32 {s(sC4096)}, 4096")
    I(f"s_mov_b32 {s(sC4096+1)}, 8192")
    I(f"s_mov_b32 {s(sC4096+2)}, 12288")
    stamp(sc, 0)
    return sc

def a_setup2(sc):
    I = sc.I
    I("s_lshl_b32 s7, s5, 19")
    srd(sc, sK, 68, off_lo=7, size=524288)
    srd(sc, sV, 70, off_lo=7, size=524288)
    I(f"s_mul_i32 s7, s6, {4*H_RT}")
    I(f"s_min_u32 s3, {s(sHH)}, 26")
    I(f"s_lshl_b32 s3, s3, 13")
    I("s_add_u32 s7, s7, s3")
    srd(sc, sH, 82, off_lo=7, size=3*H_RT + 8192, lit_off=H_OFF)
    I(f"s_lshl_b32 s7, s6, 21                  ; qt*4*O_RT")
    I("s_lshl_b32 s3, s5, 14")
    I("s_add_u32 s7, s7, s3")
    srd(sc, sO, 82, off_lo=7, size=3*O_RT + 16384, lit_off=O_OFF)
    I(f"s_mov_b32 {s(sPWO)}, s74\ns_mov_b32 {s(sPWO+1)}, s75\ns_mov_b32 {s(sPW2)}, s80\ns_mov_b32 {s(sPW2+1)}, s81")
    I(f"s_mul_i32 {s(sTW)}, s6, 5")
    I(f"s_add_u32 {s(sTW)}, {s(sTW)}, {s(sHH)}")
    I(f"s_sub_u32 {s(sTW)}, {s(sTW)}, 27")
    I(f"s_mov_b32 {s(sRETRY)}, 0")
    I(f"s_mov_b32 {s(sQS)}, {f32(math.log2(math.e)/math.sqrt(128.0))}")
    I(f"s_mov_b32 {s(sNL2E)}, {f32(-math.log2(math.e))}")
    I(f"v_mul_u32_u24 {v(vHOFF)}, {H_RT}, v1")
    I(f"v_add_u32 {v(vHOFF)}, {v(vHOFF)}, v3")
    I(f"v_lshl_add_u32 {v(vOOFF)}, v1, 19, v3")
    I("v_lshrrev_b32 v4, 4, v2                ; g")
    I("v_bfe_u32 v5, v2, 2, 2                 ; r'")
    I("v_and_b32 v6, 3, v2                    ; c")
    I("v_and_b32 v7, 15, v2                   ; q / kv")
    I("v_lshl_add_u32 v8, v4, 3, v5")
    I("v_lshlrev_b32 v8, 7, v8")
    I("v_lshl_add_u32 v8, v6, 3, v8")
    I(f"v_add_u32 v8, {RING}, v8")
    I("v_bfe_u32 v9, v2, 3, 2")
    for nb in range(4):
        I(f"v_xor_b32 v10, {nb}, v9")
        I(f"v_lshl_add_u32 {v(vAA+nb)}, v10, 5, v8")
    I("v_bfe_u32 v9, v2, 4, 1")
    I("v_bfe_u32 v10, v2, 5, 1")
    I("v_lshl_add_u32 v9, v9, 1, v10          ; pg")
    I("v_xor_b32 v9, v9, v7")
    I("v_lshlrev_b32 v8, 8, v7")
    for t in range(4):
        I(f"v_xor_b32 v10, {4*t}, v9")
        I(f"v_lshl_add_u32 {v(vKA+t)}, v10, 4, v8")
    I("v_lshrrev_b32 v9, 2, v2                ; 4g+r'")
    I("v_lshlrev_b32 v8, 8, v9")
    I("v_lshl_add_u32 v8, v6, 3, v8")
    I(f"v_add_u32 v8, {VBASE}, v8")
    I("v_and_b32 v9, 7, v9")
    for e in range(8):
        I(f"v_xor_b32 v10, {e}, v9")
        I(f"v_lshl_add_u32 {v(vVA+e)}, v10, 5, v8")
    I("v_lshrrev_b32 v9, 4, v0                ; 4w + l>>4")
    I("v_lshlrev_b32 v8, 8, v9")
    I("v_xor_b32 v10, v7, v9")
    I(f"v_lshl_add_u32 {v(vDK)}, v10, 4, v8")
    I("v_and_b32 v10, 7, v9")
    I("v_lshlrev_b32 v10, 1, v10")
    I("v_xor_b32 v10, v7, v10")
    I(f"v_lshl_add_u32 {v(vDV)}, v10, 4, v8")
    I(f"v_mov_b32 {v(vLN16)}, v3")
    if OPT["pfkv"]:
        I(f"v_and_b32 v9, 7, v2")
        I(f"v_lshlrev_b32 v9, 7, v9")
        I(f"v_lshl_add_u32 v9, v1, 10, v9")
        I(f"s_lshl_b32 s7, s6, 12")
        I(f"v_add_u32 {v(vPF)}, s7, v9")

def kv_dma(which, buf, m, soff_text):
    base = (KBUF[buf] if which == "K" else VBASE + VBUF[buf]) + 4096*m
    return (f"s_add_u32 m0, {s(sW1024)}, {base}", soff_text,
            f"buffer_load_dwordx4 {v(vDK if which=='K' else vDV)}, {s(sK if which=='K' else sV,4)}, {s(sT)} offen lds")

def gemm(ffn):
    sc = Sec("gemm_ffn" if ffn else "gemm_q"); I = sc.I
    groups = ["G", "U", "Q0", "Q1"] if ffn else ["Q0", "Q1"]
    steps = [(c, u) for c in range(5) for u in groups]
    NS = len(steps); G = len(groups)
    def acc(u, nb, j):
        if u == "Q0": return v(16*nb + 4*j, 4)
        if u == "Q1": return v(64 + 16*nb + 4*j, 4)
        if u == "G": return a(16*nb + 4*j, 4)
        return a(64 + 16*nb + 4*j, 4)
    def wdma(t, m):
        c, u = steps[t]
        if u[0] == "Q": so = (128*c + 32*m)*8192 + (128 if u == "Q1" else 0); sr = sWQ; vo = vDQ
        else: so = (128*c + 32*m)*3456; sr = sW1 if u == "G" else sW3; vo = vDF
        return (f"s_add_u32 m0, {s(sW1024)}, {RING + 16384*(t%4) + 4096*m}", f"s_mov_b32 {s(sT)}, {so}",
                f"buffer_load_dwordx4 {v(vo)}, {s(sr,4)}, {s(sT)} offen lds", f"W{t}")
    def xld(c, j, ks):
        return f"buffer_load_dwordx4 {a(XF + 64*(c%2) + 16*j + 4*ks, 4)}, {v(vXOFF)}, {s(sXN,4)}, {s(sT2)} offen offset:{1024*ks}"
    def xso(c, j): return f"s_mov_b32 {s(sT2)}, {16384*c + 4096*j}"
    def aread(t, nb, ks, hf, buf):
        return f"ds_read_b64_tr_b16 {v(SS + 16*buf + 4*ks + 2*hf, 2)}, {v(vAA+nb)} offset:{16384*(t%4) + 4096*ks + 512*hf}"
    for m in range(4):
        x = wdma(0, m); I(x[0]); I(x[1]); I(x[2], x[3])
    for j in range(4):
        I(xso(0, j))
        for ks in range(4): I(xld(0, j, ks), "X0")
    for t in (1, 2, 3):
        for m in range(4):
            x = wdma(t, m); I(x[0]); I(x[1]); I(x[2], x[3])
    a_setup2(sc)
    if not ffn: tr_setup(sc)
    I("s_waitcnt @vm:W0")
    I("s_barrier")
    for ks in range(4):
        for hf in range(2): I(aread(0, 0, ks, hf, 0), "A0")
    I("s_waitcnt @vm:X0 lgkmcnt(0)")
    stamp(sc, 1)
    g = Gaps()
    kvq = [("K", 0, m, 0) for m in range(8)] + [("K", 1, m, 32768) for m in range(8)] + [("V", 0, m, 0) for m in range(8)]
    if not ffn: kvq = []
    blk = 0
    for t, (c, u) in enumerate(steps):
        extra = []
        if c < 4:
            cnts = ([6, 5, 5, 0] if OPT["xsched"] == 0 else [8, 8, 0, 0]) if ffn else [12, 4]
            i0 = sum(cnts[:t % G])
            for i in range(i0, i0 + cnts[t % G]):
                j, ks = divmod(i, 4)
                extra.append(((xso(c+1, j),) if (ks == 0 or i == i0) else (), xld(c+1, j, ks), f"X{c+1}"))
            if not ffn and t % G == 1 and c >= 2:
                for d in tr_dma(c - 2, 40960*(c - 2)): extra.append(((d[0], d[1]), d[2], f"T{c-2}"))
        else:
            per = len(kvq) // G if kvq else 0
            for (wh, bf, m, so) in kvq[(t % G)*per:(t % G + 1)*per]:
                d = kv_dma(wh, bf, m, f"s_mov_b32 {s(sT)}, {so + 4096*m}")
                extra.append(((d[0], d[1]), d[2], "K0" if (wh == "K" and bf == 0) else "KV1"))
        for nb in range(4):
            buf = blk % 2
            k0 = len(g.m)
            for j in range(4):
                for ks in range(4):
                    d = acc(u, nb, j)
                    cc = "0" if (c == 0 and ks == 0) else d
                    g.add(f"{MF} {d}, {v(SS + 16*buf + 4*ks, 4)}, {a(XF + 64*(c%2) + 16*j + 4*ks, 4)}, {cc}")
            last = (t == NS-1 and nb == 3)
            if not last:
                nt, nnb = (t, nb+1) if nb < 3 else (t+1, 0)
                gp = [1, 2, 3, 4, 5, 6, 7, 8]
                if nb == 3:
                    if OPT["stamp"] == 3: g.S(k0, "s_memtime s[84:85]")
                    g.S(k0, f"s_waitcnt @vm:W{t+1}")
                    if OPT["stamp"] == 3: g.S(k0, "s_memtime s[86:87]")
                    g.S(k0, "s_barrier")
                    if OPT["stamp"] == 3:
                        g.S(k0, "s_memtime s[88:89]")
                        for n_ in range(3): g.V(k0 + 15, f"v_writelane_b32 v{252+n_}, s{84+2*n_}, {t}")
                n = 0
                for ks in range(4):
                    for hf in range(2):
                        g.M(k0 + gp[n], aread(nt, nnb, ks, hf, 1-buf), f"A{blk+1}"); n += 1
                w = "s_waitcnt lgkmcnt(0)"
                if nb == 3 and (t % G) == G-1: w += f" @vm:X{c+1}"
                g.S(k0 + 15, w)
            if nb == 3 and t + 4 < NS:
                for m in range(4):
                    x = wdma(t+4, m); kk = k0 + [2, 6, 10, 13][m]
                    g.S(kk-1, x[0]); g.S(kk, x[1]); g.M(kk, x[2], x[3])
            if nb < 3:
                mine = extra[(len(extra)*nb + 2)//3:(len(extra)*(nb+1) + 2)//3]
                slots = {0: [], 1: [10], 2: [10, 14], 3: [10, 12, 14], 4: [2, 6, 10, 14], 5: [2, 5, 8, 11, 14]}[len(mine)]
                if not ffn and nb == 0 and t % G == 1 and c in (2, 3):
                    for x in tr_src(c - 2): g.S(k0, x)
                for n, (pre, ld, tg) in enumerate(mine):
                    kk = k0 + slots[n]
                    if len(pre) == 2: g.S(kk-1, pre[0]); g.S(kk, pre[1])
                    elif len(pre) == 1: g.S(kk, pre[0])
                    g.M(kk, ld, tg)
            blk += 1
    def qconv(grp):
        ops = []
        for sp in range(2):
            st = 2*grp + sp
            for j in range(4):
                A0 = 64*grp + 32*sp + 4*j; B0 = A0 + 16; D = QF + 16*j + 4*st
                for r in range(4): ops.append(f"v_mul_f32 {v(A0+r)}, {s(sQS)}, {v(A0+r)}")
                for r in range(4): ops.append(f"v_mul_f32 {v(B0+r)}, {s(sQS)}, {v(B0+r)}")
                ops.append(f"v_cvt_pk_bf16_f32 {v(D)}, {v(A0)}, {v(A0+1)}")
                ops.append(f"v_cvt_pk_bf16_f32 {v(D+2)}, {v(B0)}, {v(B0+1)}")
                ops.append(f"v_cvt_pk_bf16_f32 {v(D+1)}, {v(A0+2)}, {v(A0+3)}")
                ops.append(f"v_cvt_pk_bf16_f32 {v(D+3)}, {v(B0+2)}, {v(B0+3)}")
        for sp in range(2):
            st = 2*grp + sp
            for j in range(4):
                D = QF + 16*j + 4*st
                ops.append(f"v_permlane16_swap_b32 {v(D)}, {v(D+2)}")
                ops.append(f"v_permlane16_swap_b32 {v(D+1)}, {v(D+3)}")
        return ops
    def ffn_ep():
        ops = []
        T = QF
        n = 0
        for fs in range(2):
            for j in range(4):
                b = T + 28*(n % 2); n += 1
                gsrc = [16*(2*fs + hb) + 4*j + r for hb in range(2) for r in range(4)]
                for e in range(8): ops.append(f"v_accvgpr_read_b32 {v(b+e)}, {a(gsrc[e])}")
                for e in range(8): ops.append(f"v_mul_f32 {v(b+16+e)}, {s(sNL2E)}, {v(b+e)}")
                for e in range(8): ops.append(f"v_exp_f32 {v(b+16+e)}, {v(b+16+e)}")
                for e in range(8): ops.append(f"v_accvgpr_read_b32 {v(b+8+e)}, {a(64+gsrc[e])}")
                for e in range(8): ops.append(f"v_add_f32 {v(b+16+e)}, 1.0, {v(b+16+e)}")
                for e in range(8): ops.append(f"v_rcp_f32 {v(b+16+e)}, {v(b+16+e)}")
                for e in range(8): ops.append(f"v_mul_f32 {v(b+e)}, {v(b+e)}, {v(b+8+e)}")
                for e in range(8): ops.append(f"v_mul_f32 {v(b+e)}, {v(b+e)}, {v(b+16+e)}")
                for e in range(4): ops.append(f"v_cvt_pk_bf16_f32 {v(b+24+e)}, {v(b+2*e)}, {v(b+2*e+1)}")
                so = "0" if fs == 0 else s(sC4096)
                ops.append(f"buffer_store_dwordx4 {v(b+24,4)}, {v(vHOFF)}, {s(sH,4)}, {so} offen offset:{1024*j}")
        return ops
    n = len(g.m)
    if ffn:
        g.spread(ffn_ep(), n - 128 + 4, n)
        g.emit(sc)
        for o in qconv(0): I(o)
        I("s_waitcnt @vm:K0")
        I("s_barrier")
        for o in qconv(1): I(o)
    else:
        g.spread(qconv(0), n - 64 + 4, n)
        g.emit(sc)
        I("s_nop 7")
        for o in qconv(1): I(o)
    stamp(sc, 2)
    return sc

vTD = 241
def tr_setup(sc):
    I = sc.I
    srd(sc, sWT, 82, size=8*WT_CT, lit_off=WT_OFF)
    I(f"s_mov_b32 s67, {4096*1280}")
    I(f"s_mov_b32 {s(sSRC+3)}, 0x20000")
    I(f"v_lshrrev_b32 v9, 8, {v(vDV)}")
    I(f"v_and_b32 v10, 0xff, {v(vDV)}")
    I(f"v_mul_u32_u24 {v(vTD)}, 1280, v9")
    I(f"v_add_u32 {v(vTD)}, {v(vTD)}, v10")
def tr_src(r):
    return [f"s_add_u32 {s(sU)}, {s(sTW)}, {40*r}",
            f"s_cmp_lt_u32 {s(sU)}, 54",
            f"s_cselect_b32 {s(sSRC)}, {s(sPW2)}, {s(sPWO)}",
            f"s_cselect_b32 {s(sSRC+1)}, {s(sPW2+1)}, {s(sPWO+1)}",
            f"s_cselect_b32 {s(sSRC+2)}, {1728*1280}, s67",
            f"s_cselect_b32 s66, 0, 54",
            f"s_sub_u32 s66, {s(sU)}, s66",
            f"s_mul_i32 s66, s66, 40960"]
def tr_dma(r, lds):
    return [(f"s_add_u32 m0, {s(sW1024)}, {lds + 8192*sg + 4096*hi}", f"s_add_u32 {s(sT)}, s66, {256*sg + 20480*hi}",
             f"buffer_load_dwordx4 {v(vTD)}, {s(sSRC,4)}, {s(sT)} offen lds") for sg in range(5) for hi in range(2)]

def transposer():
    sc = Sec("transp"); I = sc.I
    T = 0
    def issue(r, lds):
        for x in tr_src(r): I(x)
        for d in tr_dma(r, lds):
            I(d[0]); I(d[1]); I(d[2], f"T{r}")
    I("s_waitcnt @vm:T1")
    I("s_barrier")
    issue(2, 81920); issue(3, 122880)
    I(f"v_subrev_u32 {v(T)}, {VBASE}, {v(vVA)}")
    I("s_mul_i32 s3, s4, 10")
    for i in range(10):
        I(f"s_add_u32 s7, s3, {i}")
        I(f"s_and_b32 {s(sT)}, s7, 7")
        I(f"s_lshl_b32 {s(sT)}, {s(sT)}, 5")
        I(f"s_lshr_b32 s7, s7, 3")
        I(f"s_lshl_b32 s7, s7, 13")
        I(f"s_or_b32 s7, s7, {s(sT)}")
        I(f"v_xor_b32 {v(T+6+i)}, s7, {v(T)}")
    I(f"s_mul_i32 s7, s4, {2*WT_CT}")
    I(f"v_add_u32 {v(T+2)}, s7, {v(vLN16)}")
    I(f"v_add_u32 {v(T+3)}, {WT_CT}, {v(T+2)}")
    I(f"v_add_u32 {v(T+4)}, 4096, {v(T+2)}")
    I(f"v_add_u32 {v(T+5)}, 4096, {v(T+3)}")
    cur = [0]
    def proc(r, lds):
        I(f"s_add_u32 {s(sU)}, {s(sTW)}, {40*r}")
        I(f"s_mul_i32 {s(sT2)}, {s(sU)}, 5120")
        if r == 4:
            I(f"s_cmp_ge_u32 {s(sU)}, 182")
            I(f"s_cbranch_scc1 L_tr_done")
        base = lds if lds <= 40960 else lds - 81920
        want = lds - base
        if want != cur[0]:
            for i in range(10): I(f"v_add_u32 {v(T+6+i)}, {want - cur[0]}, {v(T+6+i)}")
            cur[0] = want
        D = 16 + 40*(r % 2)
        for half in range(2):
            for nbi in range(5):
                for hf in range(2):
                    I(f"ds_read_b64_tr_b16 {v(D + 20*half + 4*nbi + 2*hf, 2)}, {v(T+6+5*half+nbi)} offset:{base + 4096*hf}")
            I("s_waitcnt lgkmcnt(0)")
            for nbi in range(5):
                vo = v(T+2+half) if nbi < 4 else v(T+4+half)
                I(f"buffer_store_dwordx4 {v(D + 20*half + 4*nbi, 4)}, {vo}, {s(sWT,4)}, {s(sT2)} offen offset:{1024*(nbi%4)}")
    proc(0, 0); proc(1, 40960)
    I("s_barrier")
    issue(4, 40960)
    for m in range(8):
        d = kv_dma("K", 0, m, f"s_mov_b32 {s(sT)}, {4096*m}")
        I(d[0]); I(d[1]); I(d[2], "K0")
    I("s_waitcnt @vm:T3")
    I("s_barrier")
    proc(2, 81920); proc(3, 122880)
    I("s_waitcnt @vm:K0")
    I("s_barrier")
    proc(4, 40960)
    I("L_tr_done:")
    I("s_barrier")
    for m in range(8):
        for x in kv_dma("K", 1, m, f"s_mov_b32 {s(sT)}, {32768 + 4096*m}"): I(x)
    for m in range(8):
        for x in kv_dma("V", 0, m, f"s_mov_b32 {s(sT)}, {4096*m}"): I(x)
    return sc

def kread(dst, buf, blk, t): return f"ds_read_b128 {a(dst + 4*t, 4)}, {v(vKA+t)} offset:{KBUF[buf] + 4096*blk}"
def vread(dst, buf, e, p, u): return f"ds_read_b64_tr_b16 {a(dst + 4*p + 2*u, 2)}, {v(vVA+e)} offset:{VBUF[buf] + 8192*p + 4096*u}"
def pcvt(P, blk, j, hf):
    return f"v_cvt_pk_bf16_f32 {v(P + 16*(blk//2) + 4*j + 2*(blk%2) + hf)}, {v(SS + 4*j + 2*hf)}, {v(SS + 4*j + 2*hf + 1)}"
def sexp(j, r): return f"v_exp_f32 {v(SS + 4*j + r)}, {v(SS + 4*j + r)}"
def qk_group(g, kf, czero=False):
    k0 = len(g.m)
    for j in range(4):
        for t in range(4):
            c = ("0" if czero else v(NEGM + 4*j, 4)) if t == 0 else v(SS + 4*j, 4)
            g.add(f"{MF} {v(SS + 4*j, 4)}, {a(kf + 4*t, 4)}, {v(QF + 16*j + 4*t, 4)}, {c}")
    return k0
def pv_group(g, e, vf, P, first):
    k0 = len(g.m)
    for j in range(4):
        for p in range(4):
            d = a(OA + 16*e + 4*j, 4)
            g.add(f"{MF} {d}, {a(vf + 4*p, 4)}, {v(P + 16*p + 4*j, 4)}, {'0' if (first and p == 0) else d}")
    return k0
def sum_group(g, P, first):
    k0 = len(g.m)
    for j in range(4):
        for p in range(4):
            d = a(LA + 4*j, 4)
            g.add(f"{MF} {d}, {a(ONES, 4)}, {v(P + 16*p + 4*j, 4)}, {'0' if (first and p == 0) else d}")
    return k0
def soft4(g, k, P, blk, j):
    for r in range(4): g.V(k + 2*r, sexp(j, r))
    g.V(k + 3, pcvt(P, blk, j, 0)); g.V(k + 7, pcvt(P, blk, j, 1))

def rowmax_finish(sc, src):
    I = sc.I
    T = vTMP
    for swap in ("v_permlane16_swap_b32", "v_permlane32_swap_b32"):
        for j in range(4): I(f"v_mov_b32 {v(T+j)}, {v(src+j)}")
        I("s_nop 0")
        for j in range(4): I(f"{swap} {v(src+j)}, {v(T+j)}")
        for j in range(4): I(f"v_max_f32 {v(src+j)}, {v(src+j)}, {v(T+j)}")
    for j in range(4):
        for r in range(4): I(f"v_sub_f32 {v(NEGM + 4*j + r)}, 0, {v(src+j)}")

def standin():
    sc = Sec("standin"); I = sc.I
    I("L_a_attn:")
    I(f"v_mov_b32 {v(vTMP)}, 0x3f803f80")
    for t in range(4): I(kread(KF, 0, 0, t))
    for r in range(4): I(f"v_accvgpr_write_b32 {a(ONES+r)}, {v(vTMP)}")
    I("s_waitcnt lgkmcnt(0)")
    g = Gaps(); qk_group(g, KF, czero=True); g.emit(sc)
    I("s_nop 7")
    for j in range(4):
        I(f"v_max3_f32 {v(P1+j)}, {v(SS+4*j)}, {v(SS+4*j+1)}, {v(SS+4*j+2)}")
        I(f"v_max_f32 {v(P1+j)}, {v(P1+j)}, {v(SS+4*j+3)}")
    rowmax_finish(sc, P1)
    return sc

def prephase():
    sc = Sec("pre"); I = sc.I
    I("L_a_pre:")
    I(f"s_mov_b32 {s(sKOFF)}, 32768")
    I(f"s_mov_b32 {s(sCNT)}, 7")
    g = Gaps()
    for blk in range(8):
        kf = KF if blk % 2 == 0 else VF
        k0 = qk_group(g, kf)
        if blk < 7:
            for t in range(4): g.M(k0 + 3 + (t//2)*4, kread(VF if blk % 2 == 0 else KF, 0, blk+1, t))
            g.S(k0 + 15, "s_waitcnt lgkmcnt(0)")
        else:
            g.S(k0, "s_waitcnt vmcnt(0)")
            g.S(k0, "s_barrier")
    for n in range(30):
        blk, j = divmod(n, 4)
        for r in range(4): g.V(4*n + 8 + r, sexp(j, r))
        g.V(4*n + 11, pcvt(P0, blk, j, 0)); g.V(4*n + 11, pcvt(P0, blk, j, 1))
    g.emit(sc)
    for r in range(4): I(sexp(2, r))
    I(pcvt(P0, 7, 2, 0)); I(pcvt(P0, 7, 2, 1))
    stamp(sc, 3)
    return sc

def period(par, first=False, name=None, loop_end=None):
    sc = Sec(name); I = sc.I
    Pc, Pn = (P0, P1) if par == 0 else (P1, P0)
    kb = 1 - par; vb = par
    g = Gaps()
    dm = []
    for m in range(8):
        dm.append(kv_dma("V", 1-par, m, f"s_add_u32 {s(sT)}, {s(sKOFF)}, {4096*m}"))
        dm.append(kv_dma("K", par, m, f"s_add_u32 {s(sT)}, {s(sKOFF)}, {32768 + 4096*m}"))
    def put_dma(k):
        if not dm: return
        d = dm.pop(0)
        g.S(k-1, d[0]); g.S(k, d[1]); g.M(k, d[2])
    k0 = sum_group(g, Pc, first)
    soft4(g, k0, Pc, 7, 3)
    for t in range(4): g.M(k0 + [1, 3, 5, 7][t], kread(KF, kb, 0, t))
    if OPT["pfkv"]:
        d = OPT["pfkv"]
        g.S(k0 + 10, f"s_add_u32 {s(sT2)}, {s(sKOFF)}, {32768*d}")
        g.M(k0 + 10, f"buffer_load_dword {v(vPFD)}, {v(vPF)}, {s(sV,4)}, {s(sT2)} offen")
        g.S(k0 + 11, f"s_add_u32 {s(sT2)}, {s(sKOFF)}, {32768*(d+1)}")
        g.M(k0 + 11, f"buffer_load_dword {v(vPFD+1)}, {v(vPF)}, {s(sK,4)}, {s(sT2)} offen")
    for k in ((1, 5, 9, 13) if not OPT["dmaspread"] else (5, 13)): put_dma(k0 + k)
    g.S(k0 + 15, "s_waitcnt lgkmcnt(0)")
    for blk in range(8):
        k0 = qk_group(g, KF)
        if blk > 0: soft4(g, k0, Pn, blk-1, 3)
        if blk == 0 and OPT["stamp"] == 2 and not first:
            for n_, (vr, sr) in enumerate(((252, 84), (253, 86), (254, 88))):
                g.V(k0 + 2*n_, f"v_mov_b32_dpp v{vr}, v{vr} row_shr:1 row_mask:0xf bank_mask:0xf")
                g.V(k0 + 2*n_, f"v_writelane_b32 v{vr}, s{sr}, 0")
        soft4(g, k0 + 8, Pn, blk, 0)
        gp = [1, 1, 3, 5, 5, 7, 9, 9]
        for n in range(8): g.M(k0 + gp[n], vread(VF, vb, blk, n//2, n%2))
        put_dma(k0 + 13)
        g.S(k0 + 15, "s_waitcnt lgkmcnt(4)")
        k0 = pv_group(g, blk, VF, Pc, first)
        g.S(k0 + 1, "s_waitcnt lgkmcnt(0)")
        soft4(g, k0, Pn, blk, 1)
        soft4(g, k0 + 8, Pn, blk, 2)
        if blk < 7:
            for t in range(4): g.M(k0 + [1, 3, 5, 7][t], kread(KF, kb, blk+1, t))
            for k in ((5, 9, 13) if not OPT["dmaspread"] else (5, 13)): put_dma(k0 + k)
            g.S(k0 + 15, "s_waitcnt lgkmcnt(0)")
        else:
            if OPT["stamp"] == 2: g.S(k0 + 9, "s_memtime s[84:85]")
            g.S(k0 + 9, "s_waitcnt vmcnt(0)")
            if OPT["stamp"] == 2: g.S(k0 + 9, "s_memtime s[86:87]")
            g.S(k0 + 9, "s_barrier")
            if OPT["stamp"] == 2: g.S(k0 + 9, "s_memtime s[88:89]")
            g.S(k0 + 11, f"s_add_u32 {s(sKOFF)}, {s(sKOFF)}, 32768")
            if loop_end:
                g.S(k0 + 13, f"s_sub_u32 {s(sCNT)}, {s(sCNT)}, 1")
                g.S(k0 + 14, f"s_cmp_lg_u32 {s(sCNT)}, 0")
    assert not dm
    ab = OPT["abl"]
    if ab and not first:
        for k in range(len(g.m)):
            if ab & 1: g.mem[k] = [x for x in g.mem[k] if " lds" not in x[0]]
            if ab & 2: g.va[k] = [x for x in g.va[k] if "v_exp" not in x[0]]
            if ab & 4: g.va[k] = [x for x in g.va[k] if "v_cvt" not in x[0]]
            if ab & 8: g.mem[k] = [x for x in g.mem[k] if "ds_read_b128" not in x[0]]
            if ab & 16: g.mem[k] = [x for x in g.mem[k] if "tr_b16" not in x[0]]
            if ab & 32 and k < 16: g.m[k] = "s_nop 1"
            if ab & 64 and k >= 16 and (k // 16) % 2 == 1: g.m[k] = "s_nop 1"
            if ab & 128 and k >= 16 and (k // 16) % 2 == 0: g.m[k] = "s_nop 1"
    g.emit(sc)
    if loop_end: I(f"s_cbranch_scc1 {loop_end}")
    return sc

def final():
    sc = Sec("final"); I = sc.I
    stamp(sc, 4)
    g = Gaps()
    Pc = P1; vb = 1
    k0 = sum_group(g, Pc, False)
    soft4(g, k0, Pc, 7, 3)
    gp = [1, 1, 3, 5, 5, 7, 9, 9]
    for n in range(8): g.M(k0 + gp[n], vread(VF, vb, 0, n//2, n%2))
    g.S(k0 + 15, "s_waitcnt lgkmcnt(0)")
    ks = []
    for e in range(8):
        vf = VF if e % 2 == 0 else KF
        k0 = pv_group(g, e, vf, Pc, False); ks.append(k0)
        if e < 7:
            for n in range(8): g.M(k0 + 1 + n, vread(KF if e % 2 == 0 else VF, vb, e+1, n//2, n%2))
            g.S(k0 + 15, "s_waitcnt lgkmcnt(0)")
    RI = vTMP
    ops = []
    for j in range(4): ops.append(f"v_accvgpr_read_b32 {v(SS+j)}, {a(LA + 4*j)}")
    for j in range(4): ops.append(f"v_rcp_f32 {v(RI+j)}, {v(SS+j)}")
    ops.append(f"v_add_f32 {v(SS+5)}, {v(SS)}, {v(SS+1)}")
    ops.append(f"v_add_f32 {v(SS+5)}, {v(SS+5)}, {v(SS+2)}")
    ops.append(f"v_add_f32 {v(SS+5)}, {v(SS+5)}, {v(SS+3)}")
    ops.append(f"v_cmp_ngt_f32 vcc, {f32(2.0**64)}, {v(SS+5)}")
    g.spread(ops, ks[0] + 9, ks[1] + 16)
    def oconv(st):
        ops = []
        for j in range(4):
            b = P0 + 12*j
            src = [OA + 16*(2*st + hb) + 4*j + r for hb in range(2) for r in range(4)]
            for e in range(8): ops.append(f"v_accvgpr_read_b32 {v(b+e)}, {a(src[e])}")
            for e in range(8): ops.append(f"v_mul_f32 {v(b+e)}, {v(b+e)}, {v(RI+j)}")
            for e in range(4): ops.append(f"v_cvt_pk_bf16_f32 {v(b+8+e)}, {v(b+2*e)}, {v(b+2*e+1)}")
            so = "0" if st == 0 else s(sC4096 + st - 1)
            ops.append(f"buffer_store_dwordx4 {v(b+8,4)}, {v(vOOFF)}, {s(sO,4)}, {so} offen offset:{1024*j}")
        return ops
    for st in range(3): g.spread(oconv(st), ks[2*st+2] + 4, ks[2*st+3] + 16)
    g.emit(sc)
    I("s_cmp_lg_u64 vcc, 0")
    I("s_cselect_b32 s3, 1, 0")
    I(f"v_mov_b32 {v(SS+6)}, s3")
    I(f"s_lshl_b32 s7, s4, 2")
    I(f"s_add_u32 s7, s7, {FLAGS}")
    I(f"v_mov_b32 {v(SS+7)}, s7")
    I(f"ds_write_b32 {v(SS+7)}, {v(SS+6)}")
    I(f"v_mov_b32 {v(SS+7)}, {FLAGS}")
    for o in oconv(3): I(o)
    I("s_waitcnt lgkmcnt(0)")
    I("s_barrier")
    I(f"ds_read_b128 {v(SS+8,4)}, {v(SS+7)}")
    I("s_waitcnt lgkmcnt(0)")
    I(f"v_or3_b32 {v(SS+8)}, {v(SS+8)}, {v(SS+9)}, {v(SS+10)}")
    I(f"v_or_b32 {v(SS+8)}, {v(SS+8)}, {v(SS+11)}")
    I("s_nop 0")
    I(f"v_readfirstlane_b32 s3, {v(SS+8)}")
    I("s_nop 3")
    I(f"s_andn2_b32 s3, s3, {s(sRETRY)}")
    I("s_cmp_lg_u32 s3, 0")
    I("s_cbranch_scc1 L_a_truemax")
    if OPT["stamp"]:
        stamp(sc, 5)
        I("s_waitcnt vmcnt(0)")
        stamp(sc, 6)
        srd(sc, sSTP, 82, size=1024*256, lit_off=ST_OFF)
        I(f"s_lshl_b32 s3, s2, 10")
        I(f"s_lshl_b32 s7, s4, 8")
        I("s_add_u32 s3, s3, s7")
        I(f"v_lshrrev_b32 v251, 2, {v(vLN16)}")
        I(f"buffer_store_dword v255, v251, {s(sSTP,4)}, s3 offen")
        if OPT["stamp"] >= 2:
            for n_ in range(3):
                srd(sc, sSTP, 82, size=1024*256, lit_off=ST_OFF + 0x80000 + 0x40000*n_)
                I(f"buffer_store_dword v{252+n_}, v251, {s(sSTP,4)}, s3 offen")
    I("L_a_end:")
    I("s_endpgm")
    return sc

def truemax():
    s1 = Sec("tm_a"); I = s1.I
    MX = P1
    I("L_a_truemax:")
    I(f"s_mov_b32 {s(sRETRY)}, 1")
    for j in range(4): I(f"v_mov_b32 {v(MX+j)}, 0xff800000")
    I(f"s_mov_b32 {s(sKOFF)}, 0")
    s2 = Sec("tm_b"); I = s2.I
    I("L_tm_tile:")
    I("s_barrier")
    for m in range(8):
        for x in kv_dma("K", 0, m, f"s_add_u32 {s(sT)}, {s(sKOFF)}, {4096*m}"): I(x)
    I("s_waitcnt vmcnt(0)")
    I("s_barrier")
    for t in range(4): I(f"v_mov_b32 {v(P0+t)}, {v(vKA+t)}")
    I(f"s_mov_b32 {s(sCNT)}, 8")
    s3 = Sec("tm_c"); I = s3.I
    I("L_tm_blk:")
    for t in range(4): I(f"ds_read_b128 {a(KF + 4*t, 4)}, {v(P0+t)}")
    for t in range(4): I(f"v_add_u32 {v(P0+t)}, 4096, {v(P0+t)}")
    I("s_waitcnt lgkmcnt(0)")
    g = Gaps(); qk_group(g, KF, czero=True); g.emit(s3)
    I("s_nop 7")
    for j in range(4):
        I(f"v_max3_f32 {v(MX+j)}, {v(MX+j)}, {v(SS+4*j)}, {v(SS+4*j+1)}")
        I(f"v_max3_f32 {v(MX+j)}, {v(MX+j)}, {v(SS+4*j+2)}, {v(SS+4*j+3)}")
    I(f"s_sub_u32 {s(sCNT)}, {s(sCNT)}, 1")
    I(f"s_cmp_lg_u32 {s(sCNT)}, 0")
    I("s_cbranch_scc1 L_tm_blk")
    s4 = Sec("tm_d"); I = s4.I
    I(f"s_add_u32 {s(sKOFF)}, {s(sKOFF)}, 32768")
    I(f"s_cmp_lt_u32 {s(sKOFF)}, 524288")
    I("s_cbranch_scc1 L_tm_tile")
    s5 = Sec("tm_e"); I = s5.I
    I("s_barrier")
    for bf in range(2):
        for m in range(8):
            for x in kv_dma("K", bf, m, f"s_mov_b32 {s(sT)}, {32768*bf + 4096*m}"): I(x)
    for m in range(8):
        for x in kv_dma("V", 0, m, f"s_mov_b32 {s(sT)}, {4096*m}"): I(x)
    rowmax_finish(s5, MX)
    I("s_waitcnt vmcnt(0)")
    I("s_barrier")
    for t in range(4): I(kread(KF, 0, 0, t))
    I("s_waitcnt lgkmcnt(0)")
    I("s_branch L_a_pre")
    return [s1, s2, s3, s4, s5]

def gen_attn():
    st = a_setup()
    st.I(f"s_cmp_ge_u32 {s(sHH)}, 27")
    st.I("s_cbranch_scc1 L_a_noffn")
    g1 = gemm(True)
    si = standin(); pre = prephase()
    p0 = period(0, first=True, name="p0")
    lp = Sec("lp"); lp.I(".p2align 3"); lp.I("L_a_loop:")
    p1 = period(1, name="p1"); p2 = period(0, name="p2", loop_end="L_a_loop")
    fin = final()
    tm = truemax()
    nf = Sec("nf"); nf.I("L_a_noffn:")
    g2 = gemm(False); tr = transposer(); tr.I("s_branch L_a_attn")
    resolve_waits([g1]); resolve_waits([g2, tr])
    order = [st, g1, si, pre, p0, lp, p1, p2, fin] + tm + [nf, g2, tr]
    main = [si, pre, p0, p1, p2, p1, p2, fin]
    traces = [[st, g1] + main, [st, g2, tr] + main,
              [fin, tm[0], tm[1], tm[2], tm[2], tm[3], tm[1], tm[2], tm[3], tm[4], pre, p0]]
    for x in (g1, g2, si, pre, p0, p1, p2, fin): print(f"  est {x.name}: cycles={est_cycles(x)}", file=sys.stderr)
    return order, traces, kdesc("attn_kernel", 512, 256, 96)

def gen_out():
    sc = Sec("out"); I = sc.I
    sHB, sOB, sW2, sWO, sX, sOUT = 8, 12, 16, 20, 24, 28
    sA, sB = 32, 33
    NST = 7
    def frag(stage, f):
        n = 9*stage + f
        return v(4*n, 4) if n < 56 else a(160 + 4*(n-56), 4)
    vB = 224
    vA = 228
    vXO = 230; vWR = 231
    vRD = 234; XR = 236
    GA = 188
    I("out_kernel:")
    I("s_cmp_ge_u32 s2, 256")
    I("s_cbranch_scc1 L_o_end")
    I("s_load_dwordx2 s[4:5], s[0:1], 0       ; x")
    I("s_load_dwordx2 s[6:7], s[0:1], 72      ; out")
    I("s_load_dwordx2 s[34:35], s[0:1], 88    ; ws")
    if OPT["stamp"]: I("v_mov_b32 v255, 0")
    I("v_lshrrev_b32 v246, 6, v0              ; w")
    I("v_and_b32 v247, 63, v0")
    I("v_lshlrev_b32 v248, 4, v247            ; 16*lane")
    I("s_bfe_u32 s36, s2, 0x20001")
    I("s_lshl_b32 s36, s36, 3")
    I("s_bfe_u32 s37, s2, 0x30003")
    I("s_add_u32 s36, s36, s37                ; rt")
    I("s_and_b32 s37, s2, 1")
    I("s_lshl_b32 s37, s37, 2")
    I("s_lshr_b32 s38, s2, 6")
    I("s_add_u32 s37, s37, s38                ; ct")
    if OPT["bexp"] == 1: I("s_mov_b32 s36, 0\ns_mov_b32 s37, 0")
    if OPT["bexp"] == 2: I("s_mov_b32 s37, 0")
    if OPT["bexp"] == 3: I("s_mov_b32 s36, 0")
    if OPT["bexp"] == 4: I("s_and_b32 s36, s2, 7\ns_lshl_b32 s36, s36, 2\ns_bfe_u32 s37, s2, 0x20003\ns_add_u32 s36, s36, s37\ns_lshr_b32 s37, s2, 5")
    if OPT["bexp"] == 5: I("s_and_b32 s36, s2, 7\ns_and_b32 s37, s2, 7")
    I("v_lshl_add_u32 v249, v246, 12, v248")
    for jj in range(4):
        I(f"v_add_u32 v250, {jj}, v246")
        I("v_and_b32 v250, 3, v250")
        I(f"v_lshl_add_u32 {v(vB+jj)}, v250, 10, v249")
        if jj:
            I(f"v_mul_u32_u24 v250, 30720, v250")
            I(f"v_add_u32 v250, {5120*(jj-1)}, v250")
            I(f"v_add_u32 {v(vWR+jj-1)}, v250, v248")
    I(f"v_mul_u32_u24 {v(vA)}, 5120, v246")
    I(f"v_add_u32 {v(vA)}, {v(vA)}, v248")
    I(f"v_add_u32 {v(vA+1)}, 4096, {v(vA)}")
    I("s_waitcnt lgkmcnt(0)")
    I(f"s_mul_i32 s38, s36, {H_RT}")
    srd(sc, sHB, 34, off_lo=38, size=H_RT, lit_off=H_OFF)
    I(f"s_mul_i32 s38, s37, {WT_CT}")
    srd(sc, sW2, 34, off_lo=38, size=54*5120, lit_off=WT_OFF)
    srd(sc, sWO, 34, off_lo=38, size=128*5120, lit_off=WT_OFF + 54*5120)
    I(f"s_lshl_b32 s38, s36, 19")
    srd(sc, sOB, 34, off_lo=38, size=O_RT, lit_off=O_OFF)
    stamp(sc, 0)
    NS = 46
    def loads(n):
        i = n if n < 14 else n - 14
        sb, sa = (sHB, sW2) if n < 14 else (sOB, sWO)
        st = n % NST
        L = [(f"s_mov_b32 {s(sA)}, {20480*i}", None), (f"s_mov_b32 {s(sB)}, {16384*i}", None)]
        order = [0, 5, 1, 6, 2, 7, 3, 8, 4]
        for f in order:
            if f < 5:
                vo = v(vA) if f < 4 else v(vA+1)
                L.append((f"buffer_load_dwordx4 {frag(st, f)}, {vo}, {s(sa,4)}, {s(sA)} offen offset:{1024*(f%4)}", f"S{n}"))
            else:
                L.append((f"buffer_load_dwordx4 {frag(st, f)}, {v(vB+f-5)}, {s(sb,4)}, {s(sB)} offen", f"S{n}"))
        return L
    for n in range(NST-1):
        for t, tg in loads(n): I(t, tg)
    I(f"s_mul_i32 s38, s36, 81920")
    I(f"s_mul_i32 s39, s37, 160")
    I("s_add_u32 s38, s38, s39")
    srd(sc, sX, 4, off_lo=38, size=f"s_sub_u32 {s(sX+2)}, {2048*1280}, s38")
    srd(sc, sOUT, 6, off_lo=38, size=f"s_sub_u32 {s(sOUT+2)}, {2048*1280}, s38")
    I("v_and_b32 v250, 15, v247")
    I("v_lshl_add_u32 v250, v246, 4, v250     ; 16w + q")
    I(f"v_mul_u32_u24 {v(vXO)}, 1280, v250")
    I("v_lshrrev_b32 v250, 4, v247")
    I(f"v_lshl_add_u32 {v(vXO)}, v250, 3, {v(vXO)}")
    I(f"v_mul_u32_u24 {v(vRD)}, 30720, v246")
    I(f"v_add_u32 {v(vRD)}, {v(vRD)}, v248")
    I(f"s_mov_b32 s40, {f32(-math.log2(math.e))}")
    def accr(set_, nbi, jj): return 80*set_ + 20*jj + 4*nbi
    g = Gaps()
    def redwrite(set_):
        return [f"ds_write_b128 {v(vWR+jj-1)}, {a(accr(set_, nbi, jj), 4)} offset:{15360*set_ + 1024*nbi}" for jj in (1, 2, 3) for nbi in range(5)]
    T = 246
    kstart = []
    I("s_waitcnt @vm:S0")
    stamp(sc, 1)
    for n in range(NS):
        set_ = 0 if n < 14 else 1
        st = n % NST
        k0 = len(g.m); kstart.append(k0)
        for jj in range(4):
            for nbi in range(5):
                d = a(accr(set_, nbi, jj), 4)
                g.add(f"{MF} {d}, {frag(st, nbi)}, {frag(st, 5+jj)}, {'0' if n in (0, 14) else d}")
        if n + NST - 1 < NS:
            L = loads(n + NST - 1)
            g.S(k0, L[0][0]); g.S(k0 + 1, L[1][0])
            for m, (t, tg) in enumerate(L[2:]): g.M(k0 + 1 + 2*m, t, tg)
        if n == 30:
            for nbi in range(5): g.M(k0 + 2*nbi, f"buffer_load_dwordx2 {v(XR+2*nbi,2)}, {v(vXO)}, {s(sX,4)}, 0 offen offset:{32*nbi}", "XT")
        if n + 1 < NS: g.S(k0 + 19, f"s_waitcnt @vm:S{n+1}")
    for m, t in enumerate(redwrite(0)): g.M(kstart[15 + m//8] + 2*(m % 8), t)
    g.S(kstart[18], "s_waitcnt lgkmcnt(0)"); g.S(kstart[18], "s_barrier")
    for nbi in range(5):
        k0 = kstart[19 + nbi]
        for sr in range(3): g.M(k0 + 2*sr, f"ds_read_b128 {a(208 + 4*sr, 4)}, {v(vRD)} offset:{5120*sr + 1024*nbi}")
        g.S(k0 + 10, "s_waitcnt lgkmcnt(0)")
        ops = []
        for r in range(4): ops.append(f"v_accvgpr_read_b32 {v(T+r)}, {a(accr(0, nbi, 0) + r)}")
        for sr in range(3):
            for r in range(4): ops.append(f"v_accvgpr_read_b32 {v(T+4+r)}, {a(208 + 4*sr + r)}")
            for r in range(4): ops.append(f"v_add_f32 {v(T+r)}, {v(T+r)}, {v(T+4+r)}")
        for r in range(4): ops.append(f"v_mul_f32 {v(T+4+r)}, s40, {v(T+r)}")
        for r in range(4): ops.append(f"v_exp_f32 {v(T+4+r)}, {v(T+4+r)}")
        for r in range(4): ops.append(f"v_add_f32 {v(T+4+r)}, 1.0, {v(T+4+r)}")
        for r in range(4): ops.append(f"v_rcp_f32 {v(T+4+r)}, {v(T+4+r)}")
        for r in range(4): ops.append(f"v_mul_f32 {v(T+r)}, {v(T+r)}, {v(T+4+r)}")
        for r in range(4): ops.append(f"v_accvgpr_write_b32 {a(GA + 4*nbi + r)}, {v(T+r)}")
        g.spread(ops, k0 + 10, k0 + 20)
    g.emit(sc)
    stamp(sc, 2)
    I("s_nop 7")
    for t in redwrite(1): I(t)
    for i in range(20): I(f"v_accvgpr_read_b32 {v(i)}, {a(accr(1, 0, 0) + i)}")
    for i in range(20): I(f"v_accvgpr_read_b32 {v(20+i)}, {a(GA + i)}")
    I("s_mov_b32 s41, 0xffff0000")
    I("s_waitcnt @vm:XT")
    for nbi in range(5):
        for h2 in range(2):
            I(f"v_lshlrev_b32 {v(40 + 4*nbi + 2*h2)}, 16, {v(XR + 2*nbi + h2)}")
            I(f"v_and_b32 {v(41 + 4*nbi + 2*h2)}, s41, {v(XR + 2*nbi + h2)}")
    I("s_waitcnt lgkmcnt(0)")
    I("s_barrier")
    for nbi in range(5):
        for sr in range(3): I(f"ds_read_b128 {v(64 + 12*nbi + 4*sr, 4)}, {v(vRD)} offset:{15360 + 5120*sr + 1024*nbi}", f"R{nbi}")
    for nbi in range(5):
        I(f"s_waitcnt @lg:R{nbi}")
        for sr in range(3):
            for h2 in range(2):
                I(f"v_pk_add_f32 {v(4*nbi + 2*h2, 2)}, {v(4*nbi + 2*h2, 2)}, {v(64 + 12*nbi + 4*sr + 2*h2, 2)}")
        for h2 in range(2):
            I(f"v_pk_fma_f32 {v(4*nbi + 2*h2, 2)}, {v(4*nbi + 2*h2, 2)}, {v(20 + 4*nbi + 2*h2, 2)}, {v(40 + 4*nbi + 2*h2, 2)}")
        for h2 in range(2):
            I(f"v_cvt_pk_bf16_f32 {v(XR + 2*nbi + h2)}, {v(4*nbi + 2*h2)}, {v(4*nbi + 2*h2 + 1)}")
        I(f"buffer_store_dwordx2 {v(XR+2*nbi,2)}, {v(vXO)}, {s(sOUT,4)}, 0 offen offset:{32*nbi}")
    if OPT["stamp"]:
        stamp(sc, 3)
        I("s_waitcnt vmcnt(0)")
        stamp(sc, 4)
        srd(sc, sSTP, 34, size=1024*256, lit_off=ST_OFF + 0x40000)
        I(f"s_lshl_b32 s3, s2, 10")
        I(f"v_lshrrev_b32 v254, 12, {v(vB)}")
        I(f"v_lshlrev_b32 v254, 8, v254")
        I(f"v_bfe_u32 v253, {v(vB)}, 4, 6")
        I(f"v_lshl_add_u32 v254, v253, 2, v254")
        I(f"buffer_store_dword v255, v254, {s(sSTP,4)}, s3 offen")
    I("L_o_end:")
    I("s_endpgm")
    resolve_waits([sc])
    print(f"  est out: cycles={est_cycles(sc)}", file=sys.stderr)
    return [sc], [[sc]], kdesc("out_kernel", 512, 256, 96)

def main():
    ref = open(f"cdna_kernels/{NAME}.s.ref").read().split("\n")
    hdr = [l for l in ref if l.startswith(";") and "@launch" not in l and "Override launch" not in l and "grid=ceil" not in l]
    out = hdr[:]
    out.append("; @launch kernel=ln_kernel grid=(256,1,1) block=(128,1,1) lds=0")
    out.append("; @launch kernel=attn_kernel grid=(256,1,1) block=(256,1,1) lds=163840")
    for _ in range(OPT["brep"]): out.append("; @launch kernel=out_kernel grid=(256,1,1) block=(256,1,1) lds=122880")
    out.append('.amdgcn_target "amdgcn-amd-amdhsa--gfx950"')
    out.append(".text")
    kds = []; nerr = 0
    for nm, fn in (("ln_kernel", gen_ln), ("attn_kernel", gen_attn), ("out_kernel", gen_out)):
        secs, traces, kd = fn()
        out.append(f".globl {nm}\n.p2align 8\n.type {nm},@function")
        for sc in secs: out.append(sc.text())
        kds.append(kd)
        for n, tr in enumerate(traces):
            errs = check_trace(tr, f"{nm}/{n}")
            for e in errs[:20]: print(e, file=sys.stderr)
            nerr += len(errs)
    out.append("L_code_end:")
    out.append('.section .rodata,"a"')
    out += kds
    open(sys.argv[1], "w").write("\n".join(out) + "\n")
    print(f"hazard problems: {nerr}", file=sys.stderr)
main()
```

```python
import re

def R(kind, lo, n=1):
    return f"{kind}{lo}" if n == 1 else f"{kind}[{lo}:{lo+n-1}]"
def v(lo, n=1): return R("v", lo, n)
def a(lo, n=1): return R("a", lo, n)
def s(lo, n=1): return R("s", lo, n)

_reg = re.compile(r"^(-|\|)?(abs\()?([vas])(?:(\d+)|\[(\d+):(\d+)\])\)?\|?$")
def regs_of(op):
    op = op.strip()
    if op in ("vcc", "vcc_lo", "vcc_hi"): return {("x", "vcc")}
    if op == "m0": return {("x", "m0")}
    if op in ("exec", "exec_lo", "exec_hi"): return {("x", "exec")}
    m = _reg.match(op)
    if not m: return set()
    k = m.group(3)
    if m.group(4) is not None: return {(k, int(m.group(4)))}
    return {(k, i) for i in range(int(m.group(5)), int(m.group(6)) + 1)}

TRANS = ("v_exp_f32", "v_log_f32", "v_rcp_f32", "v_rsq_f32", "v_sqrt_f32", "v_sin_f32", "v_cos_f32")

class Ins:
    __slots__ = ("text", "op", "ops", "rd", "wr", "kind", "tag", "srcC", "srcAB")
    def __init__(self, text, tag=None):
        self.text = text; self.tag = tag
        t = text.split(";")[0].strip()
        parts = t.split(None, 1)
        self.op = parts[0]
        rest = parts[1] if len(parts) > 1 else ""
        ops = [o.strip() for o in rest.split(",")] if rest else []
        mods = ""
        if ops:
            sp = ops[-1].split(None, 1)
            ops[-1] = sp[0]; mods = sp[1] if len(sp) > 1 else ""
        self.ops = ops
        op = self.op
        rd, wr = set(), set()
        self.srcC = set(); self.srcAB = set()
        allr = [regs_of(o) for o in ops]
        U = lambda l: set().union(*l) if l else set()
        if op.endswith(":") or op.startswith("."):
            self.kind = "dir"
        elif op.startswith("v_mfma"):
            self.kind = "mfma"; wr = allr[0]; rd = U(allr[1:]); self.srcC = allr[3]; self.srcAB = allr[1] | allr[2]
        elif op.startswith("ds_read"):
            self.kind = "dsr"; wr = allr[0]; rd = U(allr[1:])
        elif op.startswith("ds_write") or op.startswith("ds_or_b32") or op.startswith("ds_add_u32"):
            self.kind = "dsw"; rd = U(allr)
        elif op.startswith("buffer_load") or op.startswith("global_load"):
            if " lds" in " " + mods or "_lds_" in op:
                self.kind = "dma"; rd = U(allr) | {("x", "m0")}
            else:
                self.kind = "vld"; wr = allr[0]; rd = U(allr[1:])
        elif op.startswith("buffer_store") or op.startswith("global_store"):
            self.kind = "vst"; rd = U(allr)
        elif op.startswith("global_atomic") or op.startswith("buffer_atomic"):
            if "sc0" in mods and op.startswith("global"):
                self.kind = "vld"; wr = allr[0]; rd = U(allr[1:])
            elif "sc0" in mods:
                self.kind = "vld"; wr = allr[0]; rd = U(allr)
            else:
                self.kind = "vst"; rd = U(allr)
        elif op in ("buffer_inv", "buffer_wbl2"):
            self.kind = "vst"
        elif op.startswith("s_load") or op.startswith("s_memtime") or op.startswith("s_memrealtime") or op.startswith("s_buffer_load"):
            self.kind = "smem"; wr = allr[0]; rd = U(allr[1:])
        elif op == "s_waitcnt": self.kind = "wait"
        elif op == "s_nop": self.kind = "nop"
        elif op in ("s_barrier", "s_endpgm", "s_setprio", "s_sleep", "s_branch") or op.startswith("s_cbranch"):
            self.kind = "ctl"
        elif op.startswith("s_cmp") or op.startswith("s_bitcmp"):
            self.kind = "salu"; rd = U(allr)
        elif op.startswith("s_"):
            self.kind = "salu"; wr = allr[0]; rd = U(allr[1:])
            if "saveexec" in op: wr = wr | {("x", "exec")}
            if op in ("s_addk_i32", "s_mulk_i32"): rd |= allr[0]
        elif op.startswith("v_"):
            self.kind = "valu"
            if op.startswith("v_permlane") and "swap" in op:
                wr = allr[0] | allr[1]; rd = set(wr)
            elif op.startswith("v_cmp"):
                wr = allr[0]; rd = U(allr[1:])
            elif op.startswith("v_add_co") or op.startswith("v_addc_co") or op.startswith("v_sub_co"):
                wr = allr[0] | allr[1]; rd = U(allr[2:])
            else:
                wr = allr[0]; rd = U(allr[1:])
                if op.startswith("v_fmac") or op.startswith("v_writelane") or "_dpp" in op and "bound_ctrl" not in mods: rd |= allr[0]
        else:
            raise ValueError("unknown instr: " + text)
        self.rd, self.wr = rd, wr

    @property
    def is_trans(self): return self.op.replace("_e32", "").replace("_e64", "") in TRANS

class Sec:
    def __init__(self, name): self.name = name; self.ins = []
    def I(self, text, tag=None):
        for t in text.split("\n"):
            t = t.strip()
            if t: self.ins.append(Ins(t, tag))
    def C(self, text): self.ins.append(Cmt(text))
    def text(self): return "\n".join(("" if (i.kind == "dir") else "    ") + i.text for i in self.ins)

class Cmt:
    kind = "dir"; op = ";"; tag = None
    def __init__(self, t): self.text = "; " + t; self.rd = set(); self.wr = set()

def parse_wait(text):
    vm = re.search(r"vmcnt\((\d+)\)", text); lg = re.search(r"lgkmcnt\((\d+)\)", text)
    return (int(vm.group(1)) if vm else None, int(lg.group(1)) if lg else None)

def check_trace(secs, label=""):
    tr = [i for sc in secs for i in sc.ins if i.kind != "dir"]
    errs = []
    vmq = []
    lgq = []
    hist = []
    pos = 0
    lastw = {}
    mfw = {}
    mfc = {}
    salw = {}
    stw = {}
    def E(i, msg): errs.append(f"[{label}] #{n} '{i.text}': {msg}")
    for n, i in enumerate(tr):
        k = i.kind
        if k == "wait":
            vm, lg = parse_wait(i.text)
            if vm is not None:
                while len(vmq) > vm: vmq.pop(0)
            if lg is not None:
                if any(x[0] == "smem" for x in lgq) and lg > 0: E(i, "counted lgkm wait with SMEM outstanding")
                while len(lgq) > lg: lgq.pop(0)
            pos += 1; continue
        if k == "nop":
            pos += int(i.ops[0], 0) + 1; continue
        touched = i.rd | i.wr
        for dst in vmq:
            if dst & touched: E(i, f"touches reg with pending vmem load {sorted(dst & touched)[:2]}")
        for kk, dst in lgq:
            if dst & touched: E(i, f"touches reg with pending lds/smem load {sorted(dst & touched)[:2]}")
        def dist(tbl, r): return pos - tbl[r][0] - 1 if r in tbl else 99
        if k == "mfma":
            for r in i.rd:
                if dist(lastw, r) < 2: E(i, f"VALU write -> MFMA read {r} dist {dist(lastw, r)}")
            for r in i.srcAB:
                if dist(mfw, r) < 8: E(i, f"MFMA D -> MFMA A/B {r} dist {dist(mfw, r)}")
            for r in i.srcC:
                if r in mfw and mfw[r][1].wr != i.srcC and dist(mfw, r) < 6: E(i, f"MFMA D -> overlapping C {r}")
            for r in i.wr:
                if r in mfw and r not in i.srcC and dist(mfw, r) < 6: E(i, f"MFMA D WAW close {r} dist {dist(mfw, r)}")
            if dist(lastw, ("x", "exec")) < 4: E(i, "exec write -> mfma")
        if k in ("valu", "dsr", "dsw", "vld", "vst", "dma"):
            for r in touched:
                if dist(mfw, r) < 8: E(i, f"MFMA D -> use {r} dist {dist(mfw, r)}")
        if k == "valu":
            for r in i.wr:
                if r in mfc and pos - mfc[r] - 1 < 3: E(i, f"MFMA srcC WAR {r}")
                if r in stw and pos - stw[r] - 1 < 2: E(i, f"wide store data WAR {r}")
            for r in i.rd:
                if r in lastw:
                    p, w = lastw[r]; d = pos - p - 1
                    if w.is_trans and not i.is_trans and d < 1: E(i, f"trans -> valu {r}")
                    if i.op.startswith("v_permlane") and d < 2: E(i, f"valu -> permlane {r} dist {d}")
                    if "_dpp" in i.op and r[0] == "v" and d < 2: E(i, f"valu -> dpp {r} dist {d}")
                    if (i.op.startswith("v_readfirstlane") or i.op.startswith("v_readlane")) and r[0] == "v" and d < 1: E(i, f"valu -> readlane {r}")
                    if r[0] in ("s", "x") and d < 2: E(i, f"valu sgpr write -> valu read {r} dist {d}")
        if k in ("vld", "dsr"):
            for r in i.wr:
                if r in stw and pos - stw[r] - 1 < 1: E(i, f"wide store data WAR (load) {r}")
        if k in ("vld", "vst", "dma"):
            for r in i.rd:
                if r[0] == "s" and dist(lastw, r) < 5: E(i, f"valu sgpr write -> vmem read {r}")
        if k == "dma":
            if ("x", "m0") in salw and pos - salw[("x", "m0")] - 1 < 1: E(i, "m0 write -> dma")
        if k == "valu":
            for r in i.wr: lastw[r] = (pos, i); mfw.pop(r, None)
        if k == "salu":
            for r in i.wr: salw[r] = pos; lastw.pop(r, None)
        if k == "mfma":
            for r in i.wr: mfw[r] = (pos, i); lastw.pop(r, None)
            for r in i.srcC: mfc[r] = pos
        if k in ("vld", "vst", "dma"):
            vmq.append(set(i.wr))
            if len(vmq) > 63: E(i, "more than 63 vmem outstanding")
            if k == "vst" and ("x4" in i.op or "x3" in i.op):
                data = regs_of(i.ops[0]) if i.op.startswith("buffer") else regs_of(i.ops[1])
                for r in data: stw[r] = pos
        if k in ("dsr", "dsw"):
            lgq.append(("ds", set(i.wr)))
        if k == "smem": lgq.append(("smem", set(i.wr)))
        pos += 1
    return errs

def est_cycles(sec):
    t = 0; mfree = 0; vfree = 0; nm = 0; over = 0; prev = None; lastm = None
    for i in sec.ins:
        k = i.kind
        if k == "dir": continue
        if k == "mfma":
            st = max(t, mfree, vfree)
            if lastm is not None and st - lastm > 16: over += 1
            lastm = st
            t = st + 4; vfree = st + 8; mfree = st + 16; nm += 1
        elif k == "valu":
            st = max(t, vfree); c = 8 if i.is_trans else 4
            t = st + c; vfree = t
        elif k in ("dsr", "dsw", "vld", "vst", "dma"):
            st = max(t, vfree)
            if prev == "valu": st += 8
            t = st + (16 if k == "dsw" else 4); vfree = t
        elif k == "nop": t += 4 * (int(i.ops[0], 0) + 1)
        else: t += 4
        prev = k
    return max(t, mfree), nm, over

class Gaps:
    def __init__(self):
        self.m = []; self.sh = []; self.mem = []; self.va = []
    def add(self, text):
        self.m.append(text); self.sh.append([]); self.mem.append([]); self.va.append([])
        return len(self.m) - 1
    def cost(self, k):
        c = 0
        for t in self.mem[k]: c += 4
        for t in self.va[k]:
            if t[0].endswith(":"): continue
            c += 8 if t[0].split()[0] in TRANS else 4
        c += 4 * max(0, len([x for x in self.sh[k] if not x[0].endswith(":")]) - 1)
        return c
    def S(self, k, text, tag=None): self.sh[k].append((text, tag))
    def M(self, k, text, tag=None): self.mem[k].append((text, tag))
    def V(self, k, text, tag=None): self.va[k].append((text, tag))
    def spread(self, ops, k0, k1):
        cst = lambda t: 8 if t.split()[0] in TRANS else 4
        base = [self.cost(k) for k in range(k0, k1)]
        tot = sum(base) + sum(cst(t) for t in ops)
        level = max(8.0, tot / (k1 - k0))
        qi = 0; cum = 0.0; used = 0
        for idx, k in enumerate(range(k0, k1)):
            cum += level; used += base[idx]
            while qi < len(ops) and (used + cst(ops[qi]) <= cum + 1e-6 or k == k1 - 1):
                self.va[k].append((ops[qi], None)); used += cst(ops[qi]); qi += 1
            if level == 8.0: used = max(used, cum) if False else used
        assert qi == len(ops)
    def fill(self, ops, k0, force_by=None):
        cst = lambda t: 8 if t.split()[0] in TRANS else 4
        n = len(self.m); k = k0; plan = []; used = {}
        ok = True
        for t in ops:
            mem = t.startswith("buffer_") or t.startswith("ds_")
            if mem and (self.va[k] or any(p == k for p, _, m in plan if not m)): k += 1
            while k < n and self.cost(k) + used.get(k, 0) + cst(t) > 8: k += 1
            if k >= n or (force_by is not None and k >= force_by): ok = False; break
            plan.append((k, t, mem)); used[k] = used.get(k, 0) + cst(t)
        if ok:
            for k_, t, mem in plan: (self.mem if mem else self.va)[k_].append((t, None))
            return k
        assert force_by is not None, "does not fit"
        self.spread(ops, k0, force_by)
        return force_by - 1
    def emit(self, sec):
        for k in range(len(self.m)):
            sec.I(self.m[k])
            for t, tg in self.sh[k] + self.mem[k] + self.va[k]:
                sec.I(t, tg)

def resolve_waits(secs):
    vm = []; lg = []
    for sc in secs:
        for i in sc.ins:
            if i.kind in ("vld", "vst", "dma"): vm.append(i.tag)
            elif i.kind in ("dsr", "dsw"): lg.append(i.tag)
            elif i.kind == "wait" and "@" in i.text:
                out = []
                for tok in i.text.split()[1:]:
                    if tok.startswith("@"):
                        c, tag = tok[1:].split(":")
                        q = vm if c == "vm" else lg
                        idx = [n for n, t in enumerate(q) if t == tag]
                        assert idx, f"no op tagged {tag} before wait in {sc.name}"
                        cnt = len(q) - 1 - idx[-1]
                        mx = 63 if c == "vm" else 15
                        assert cnt <= mx or True
                        out.append(f"{'vmcnt' if c == 'vm' else 'lgkmcnt'}({min(cnt, mx)})")
                    else: out.append(tok)
                i.text = "s_waitcnt " + " ".join(out)

def kdesc(name, vgpr, accum, sgpr=96):
    return f""".p2align 6
.amdhsa_kernel {name}
  .amdhsa_next_free_vgpr {vgpr}
  .amdhsa_next_free_sgpr {sgpr}
  .amdhsa_accum_offset {accum}
  .amdhsa_group_segment_fixed_size 0
  .amdhsa_kernarg_size 96
  .amdhsa_user_sgpr_count 2
  .amdhsa_user_sgpr_kernarg_segment_ptr 1
  .amdhsa_system_sgpr_workgroup_id_x 1
  .amdhsa_float_denorm_mode_32 3
.end_amdhsa_kernel
"""
```

```python
import sys, math, struct
from asmlib import *

NAME = "recurrent_scan__gqa_block_cached__glu_gated_swiglu__prompt"
OPT = dict(stamp=0, lnfuse=1, pfc=1, ldsc1=1, xsc1=1, laend=2, kvflag=0, wflag=0)
for x in sys.argv[2:]:
    k, val = x.split("="); assert k in OPT, k; OPT[k] = int(val)
KNAME = NAME + "_kernel" if OPT["lnfuse"] else "attn_kernel"

def f32(x): return "0x%08x" % struct.unpack("<I", struct.pack("<f", x))[0]

XN_OFF = 0x0000000
H_OFF  = 0x0300000
O_OFF  = 0x0A00000
WT_OFF = 0x1A00000
FL_OFF = 0x2200000
F1_OFF = 0x1000; F3_OFF = 0x20000; FL_SIZE = 0x40000
ST_OFF = 0x2400000
H_RT = 54 * 4096; O_RT = 128 * 4096; WT_CT = 182 * 5120
MF = "v_mfma_f32_16x16x32_bf16"
QS = math.log2(math.e) / math.sqrt(128.0)
SPIN = 1 << 18
FLG = {0: "", 1: " sc1", 2: " nt", 3: " sc0", 4: " sc0 sc1"}
LD = FLG[OPT["ldsc1"]]; XLD = FLG[OPT["xsc1"]]; KVF = FLG[OPT["kvflag"]]; WF = FLG[OPT["wflag"]]

def srd_l(d, base, off_lo=None, size=None, lit_off=0):
    L = []
    b = base
    if lit_off:
        L += [f"s_add_u32 {s(d)}, {s(base)}, {hex(lit_off)}", f"s_addc_u32 {s(d+1)}, {s(base+1)}, 0"]; b = d
    if off_lo is not None:
        L += [f"s_add_u32 {s(d)}, {s(b)}, {s(off_lo)}", f"s_addc_u32 {s(d+1)}, {s(b+1)}, 0"]
    elif not lit_off:
        L += [f"s_mov_b32 {s(d)}, {s(base)}", f"s_mov_b32 {s(d+1)}, {s(base+1)}"]
    L.append(f"s_mov_b32 {s(d+2)}, {hex(size)}" if isinstance(size, int) else size)
    L.append(f"s_mov_b32 {s(d+3)}, 0x20000")
    return L
def srd(sec, *a, **k):
    for x in srd_l(*a, **k): sec.I(x)

sK, sV, sWQ, sW1, sW3, sXN, sH, sO = 8, 12, 16, 20, 24, 28, 32, 36
sSRC, sWT = 20, 24
sHB, sW2, sWO, sOB, sX, sOUT = 16, 20, 24, 28, 32, 60
sW1024 = 40; sT = 41; sKOFF = 42; sCNT = 43; sHH = 44; sC4096 = 45
sRETRY = 48; sTW = 49; sU = 50; sC2 = 51; sGS = 52; sRTB = 53; sCT = 54; sT2 = 55
sA, sB, sNL2E, sSPIN = 56, 57, 58, 59
pK, pV, pWQ, pWO, pW1, pW3, pW2, pWS, pX, pOUT, pDBG = 68, 70, 72, 74, 76, 78, 80, 82, 94, 96, 98
sFL, sDBG, sTAG = 84, 88, 92
QF, P0, P1, SS, NEGM = 0, 64, 128, 192, 208
vKA, vVA, vDK, vDV = 224, 228, 236, 237
vLN16 = 238
vXOFF, vDQ, vDF, vAA = 239, 240, 241, 242
vB, vA = 239, 243
vPOLL = 245
vOOFF, vHOFF = 246, 247
vTMP = 248
vTD = 241
OA, LA, KF, VF, ONES = 0, 128, 144, 160, 176
XF = 64
RING = 98304
KBUF = [0, 32768]; VBASE = 65536; VBUF = [0, 32768]
FLAGS = 131072

def stamp(sec, idx):
    if not OPT["stamp"]: return
    sec.I(f"s_memtime s[64:65]")
    sec.I(f"s_waitcnt lgkmcnt(0)")
    sec.I(f"v_writelane_b32 v255, s64, {idx}")
    sec.I(f"s_memrealtime s[64:65]")
    sec.I(f"s_waitcnt lgkmcnt(0)")
    sec.I(f"v_writelane_b32 v255, s64, {idx+32}")

def code_prefetch(sc, sr, vt, who):
    I = sc.I
    I(f"s_getpc_b64 {s(sr,2)}")
    I(f"L_pc_{who}:")
    if who == "ln":
        I(f"s_add_u32 {s(sr)}, {s(sr)}, {KNAME}-L_pc_{who}")
        I(f"s_addc_u32 {s(sr+1)}, {s(sr+1)}, 0")
    else:
        I(f"s_sub_u32 {s(sr)}, {s(sr)}, L_pc_{who}-{KNAME}")
        I(f"s_subb_u32 {s(sr+1)}, {s(sr+1)}, 0")
    I(f"s_mov_b32 {s(sr+2)}, L_code_end-{KNAME}")
    I(f"s_mov_b32 {s(sr+3)}, 0x20000")
    I("s_lshr_b32 s3, s2, 3")
    I("s_lshl_b32 s3, s3, 12")
    I(f"v_and_b32 {v(vt)}, 31, v0")
    I(f"v_lshlrev_b32 {v(vt)}, 7, {v(vt)}")
    I(f"buffer_load_dword {v(vt+1)}, {v(vt)}, {s(sr,4)}, s3 offen")

def ln_addr(sc, vl, vs, tmp):
    I = sc.I
    I(f"v_and_b32 {v(tmp)}, 3, v0")
    I(f"v_bfe_u32 {v(tmp+1)}, v0, 6, 1")
    I(f"v_lshl_add_u32 {v(tmp)}, {v(tmp+1)}, 2, {v(tmp)}")
    I(f"v_bfe_u32 {v(tmp+1)}, v0, 2, 4                   ; p")
    I(f"v_mul_u32_u24 {v(vl)}, 1280, {v(tmp)}")
    I(f"v_lshl_add_u32 {v(vl)}, {v(tmp+1)}, 4, {v(vl)}")
    I(f"v_lshlrev_b32 {v(vs)}, 7, {v(tmp+1)}")
    I(f"v_lshl_add_u32 {v(vs)}, {v(tmp)}, 4, {v(vs)}")
def ln_compute(sc, D, F, T, vs, sdst, sblk, tag, flags):
    I = sc.I
    I("s_mov_b32 s3, 0xffff0000")
    for i in range(5):
        I(f"s_waitcnt @vm:{tag}{i}")
        for r in range(4):
            d = 4*i + r
            I(f"v_lshlrev_b32 {v(F+2*d)}, 16, {v(D+d)}")
            I(f"v_and_b32 {v(F+1+2*d)}, s3, {v(D+d)}")
    def tree(op, first):
        for h in range(2): I(first(h))
        for d in range(2, 10):
            for h in range(2): I(op(h, d))
        I(f"v_pk_add_f32 {v(T,2)}, {v(T,2)}, {v(T+2,2)}")
        I(f"v_add_f32 {v(T)}, {v(T)}, {v(T+1)}")
        for sh in (4, 8):
            I("s_nop 1")
            I(f"v_add_f32_dpp {v(T)}, {v(T)}, {v(T)} row_ror:{sh} row_mask:0xf bank_mask:0xf")
        for swap in ("v_permlane16_swap_b32", "v_permlane32_swap_b32"):
            I(f"v_mov_b32 {v(T+1)}, {v(T)}")
            I("s_nop 1")
            I(f"{swap} {v(T)}, {v(T+1)}")
            I(f"v_add_f32 {v(T)}, {v(T)}, {v(T+1)}")
    e = lambda h, d: v(F + 20*h + 2*d, 2)
    tree(lambda h, d: f"v_pk_add_f32 {v(T+2*h,2)}, {v(T+2*h,2)}, {e(h,d)}", lambda h: f"v_pk_add_f32 {v(T+2*h,2)}, {e(h,0)}, {e(h,1)}")
    I(f"v_mul_f32 {v(T)}, {f32(-1.0/640)}, {v(T)}     ; -mean")
    I(f"v_mov_b32 {v(T+1)}, {v(T)}")
    for d in range(20): I(f"v_pk_add_f32 {v(F+2*d,2)}, {v(F+2*d,2)}, {v(T,2)}")
    tree(lambda h, d: f"v_pk_fma_f32 {v(T+2*h,2)}, {e(h,d)}, {e(h,d)}, {v(T+2*h,2)}",
         lambda h: f"v_pk_mul_f32 {v(T+2*h,2)}, {e(h,0)}, {e(h,0)}\nv_pk_fma_f32 {v(T+2*h,2)}, {e(h,1)}, {e(h,1)}, {v(T+2*h,2)}")
    I(f"v_mov_b32 {v(T+1)}, {f32(1e-5)}")
    I(f"v_fmac_f32 {v(T+1)}, {f32(1.0/640)}, {v(T)}")
    I(f"v_rsq_f32 {v(T)}, {v(T+1)}")
    I("s_nop 0")
    I(f"v_mul_f32 {v(T)}, {f32(QS)}, {v(T)}")
    I(f"v_mov_b32 {v(T+1)}, {v(T)}")
    for i in range(5):
        for r in range(4):
            d = 4*i + r
            I(f"v_pk_mul_f32 {v(F+2*d,2)}, {v(F+2*d,2)}, {v(T,2)}")
        for r in range(4):
            d = 4*i + r
            I(f"v_cvt_pk_bf16_f32 {v(D+d)}, {v(F+2*d)}, {v(F+2*d+1)}")
        if i % 2 == 0: I(f"s_add_u32 s3, {s(sblk)}, {2048*i}")
        I(f"buffer_store_dwordx4 {v(D+4*i,4)}, {v(vs)}, {s(sdst,4)}, s3 offen offset:{2048*(i%2)}{flags}")

def gen_ln():
    sc = Sec("ln"); I = sc.I
    I("ln_kernel:")
    I("s_cmp_ge_u32 s2, 256")
    I("s_cbranch_scc1 L_ln_end")
    I("s_load_dwordx2 s[4:5], s[0:1], 0")
    I("s_load_dwordx2 s[6:7], s[0:1], 88")
    ln_addr(sc, 1, 2, 3)
    I("s_mul_i32 s16, s2, 10240")
    I("s_waitcnt lgkmcnt(0)")
    srd(sc, 8, 4, size=2048*1280)
    srd(sc, 12, 6, size=2048*1280, lit_off=XN_OFF)
    for i in range(5): I(f"buffer_load_dwordx4 {v(8+4*i,4)}, v1, s[8:11], s16 offen offset:{256*i}", f"LN{i}")
    if OPT["pfc"]: code_prefetch(sc, 20, 76, "ln")
    ln_compute(sc, 8, 32, 4, 2, 12, 16, "LN", "")
    I("L_ln_end:")
    I("s_endpgm")
    resolve_waits([sc])
    return [sc], [[sc]], kdesc("ln_kernel", 80, 80, 32)

LND, LNF, LNT, vLNL, vLNS = 128, 148, 188, 126, 127
def a_setup():
    sc = Sec("a_setup"); I = sc.I
    I(f"{KNAME}:")
    I("s_cmp_ge_u32 s2, 256")
    I("s_cbranch_scc1 L_a_end")
    I(f"s_load_dwordx2 {s(pX,2)}, s[0:1], 0")
    I(f"s_load_dwordx2 {s(pWS,2)}, s[0:1], 88")
    I(f"s_load_dwordx4 {s(pK,4)}, s[0:1], 8      ; K, V")
    I(f"s_load_dwordx4 {s(pWQ,4)}, s[0:1], 24")
    I(f"s_load_dwordx4 {s(pW1,4)}, s[0:1], 48     ; w1, w3")
    I(f"s_load_dwordx2 {s(pW2,2)}, s[0:1], 64     ; w2")
    I(f"s_load_dwordx4 {s(pOUT,4)}, s[0:1], 72")
    if OPT["stamp"]: I("v_mov_b32 v255, 0")
    I("v_lshrrev_b32 v1, 6, v0")
    I("v_and_b32 v2, 63, v0                   ; lane")
    I(f"v_readfirstlane_b32 s4, v1")
    I("s_and_b32 s5, s2, 7")
    I("s_lshl_b32 s5, s5, 2")
    I("s_bfe_u32 s6, s2, 0x20003")
    I("s_add_u32 s5, s5, s6                   ; head")
    I("s_lshr_b32 s6, s2, 5                   ; q tile")
    I(f"s_and_b32 {s(sHH)}, s2, 31")
    I(f"s_lshl_b32 {s(sW1024)}, s4, 10")
    if OPT["lnfuse"]: ln_addr(sc, vLNL, vLNS, 4)
    I(f"v_lshlrev_b32 v3, 4, v2                ; 16*lane")
    I("v_lshrrev_b32 v4, 3, v0                ; 8w + l>>3")
    I("v_bfe_u32 v5, v0, 4, 1")
    I("v_bfe_u32 v6, v0, 6, 1")
    I("v_lshl_add_u32 v5, v6, 1, v5")
    I("v_lshlrev_b32 v5, 1, v5")
    I("v_and_b32 v6, 7, v0")
    I("v_xor_b32 v5, v5, v6")
    I("v_lshlrev_b32 v5, 4, v5")
    I(f"v_lshl_add_u32 {v(vDQ)}, v4, 13, v5")
    I(f"v_mul_u32_u24 {v(vDF)}, 3456, v4")
    I(f"v_add_u32 {v(vDF)}, {v(vDF)}, v5")
    I(f"v_mul_u32_u24 {v(vXOFF)}, 81920, v1")
    I("v_bfe_u32 v4, v2, 3, 1")
    I("v_mul_u32_u24 v4, 10240, v4")
    I("v_lshrrev_b32 v5, 4, v2")
    I("v_lshl_add_u32 v4, v5, 7, v4")
    I("v_lshl_add_u32 v4, v6, 4, v4")
    I(f"v_add_u32 {v(vXOFF)}, {v(vXOFF)}, v4")
    I("s_waitcnt lgkmcnt(0)")
    stamp(sc, 0)
    if OPT["lnfuse"]:
        I("s_mul_i32 s7, s2, 10240")
        I("s_cmp_lt_u32 s4, 2")
        I(f"s_cselect_b32 s3, 10240, 0")
        srd(sc, sX, pX, off_lo=7, size=f"s_mov_b32 {s(sX+2)}, s3")
        for i in range(5): I(f"buffer_load_dwordx4 {v(LND+4*i,4)}, {v(vLNL)}, {s(sX,4)}, 0 offen offset:{256*i}", f"LN{i}")
    I("s_lshl_b32 s7, s6, 7")
    I(f"s_add_u32 s7, s7, {hex(FL_OFF)}")
    I(f"s_load_dwordx2 {s(sTAG,2)}, {s(pWS,2)}, s7")
    I("s_mul_i32 s7, s6, 4*81920")
    srd(sc, sXN, pWS, off_lo=7, size=4*81920, lit_off=XN_OFF)
    I("s_lshl_b32 s7, s5, 8")
    srd(sc, sWQ, pWQ, off_lo=7, size=f"s_sub_u32 {s(sWQ+2)}, {640*8192}, s7")
    I(f"s_min_u32 s7, {s(sHH)}, 26")
    I(f"s_lshl_b32 s7, s7, 7")
    srd(sc, sW1, pW1, off_lo=7, size=f"s_sub_u32 {s(sW1+2)}, {640*3456}, s7")
    srd(sc, sW3, pW3, off_lo=7, size=f"s_sub_u32 {s(sW3+2)}, {640*3456}, s7")
    return sc

def a_setup2(sc):
    I = sc.I
    I(f"s_mov_b32 {s(sC4096)}, 4096")
    I(f"s_mov_b32 {s(sC4096+1)}, 8192")
    I(f"s_mov_b32 {s(sC4096+2)}, 12288")
    I("s_lshl_b32 s7, s5, 19")
    srd(sc, sK, pK, off_lo=7, size=524288)
    srd(sc, sV, pV, off_lo=7, size=524288)
    I(f"s_mul_i32 s7, s6, {4*H_RT}")
    I(f"s_min_u32 s3, {s(sHH)}, 26")
    I(f"s_lshl_b32 s3, s3, 13")
    I("s_add_u32 s7, s7, s3")
    srd(sc, sH, pWS, off_lo=7, size=3*H_RT + 8192, lit_off=H_OFF)
    I(f"s_lshl_b32 s7, s6, 21                  ; qt*4*O_RT")
    I("s_lshl_b32 s3, s5, 14")
    I("s_add_u32 s7, s7, s3")
    srd(sc, sO, pWS, off_lo=7, size=3*O_RT + 16384, lit_off=O_OFF)
    srd(sc, sFL, pWS, size=FL_SIZE, lit_off=FL_OFF)
    srd(sc, sDBG, pDBG, size=256)
    I(f"s_mul_i32 {s(sTW)}, s6, 5")
    I(f"s_add_u32 {s(sTW)}, {s(sTW)}, {s(sHH)}")
    I(f"s_sub_u32 {s(sTW)}, {s(sTW)}, 27")
    I(f"s_mov_b32 {s(sRETRY)}, 0")
    I(f"s_mov_b32 {s(sC2)}, {f32(QS*QS)}")
    I(f"s_mov_b32 {s(sGS)}, {f32(-math.sqrt(128.0))}")
    I(f"s_mov_b32 {s(sNL2E)}, {f32(-math.log2(math.e))}")
    I(f"s_bfe_u32 {s(sRTB)}, s2, 0x20001")
    I("s_lshl_b32 s7, s6, 2")
    I(f"s_add_u32 {s(sRTB)}, {s(sRTB)}, s7")
    I(f"s_and_b32 {s(sCT)}, s2, 1")
    I(f"s_lshl_b32 {s(sCT)}, {s(sCT)}, 2")
    I("s_bfe_u32 s7, s2, 0x20003")
    I(f"s_add_u32 {s(sCT)}, {s(sCT)}, s7")
    I(f"v_mul_u32_u24 {v(vHOFF)}, {H_RT}, v1")
    I(f"v_add_u32 {v(vHOFF)}, {v(vHOFF)}, v3")
    I(f"v_lshl_add_u32 {v(vOOFF)}, v1, 19, v3")
    I("v_lshrrev_b32 v4, 4, v2                ; g")
    I("v_bfe_u32 v5, v2, 2, 2                 ; r'")
    I("v_and_b32 v6, 3, v2                    ; c")
    I("v_and_b32 v7, 15, v2                   ; q / kv")
    I("v_lshl_add_u32 v8, v4, 3, v5")
    I("v_lshlrev_b32 v8, 7, v8")
    I("v_lshl_add_u32 v8, v6, 3, v8")
    I(f"v_add_u32 v8, {RING}, v8")
    I("v_bfe_u32 v9, v2, 3, 2")
    for nb in range(4):
        I(f"v_xor_b32 v10, {nb}, v9")
        I(f"v_lshl_add_u32 {v(vAA+nb)}, v10, 5, v8")
    I("v_bfe_u32 v9, v2, 4, 1")
    I("v_bfe_u32 v10, v2, 5, 1")
    I("v_lshl_add_u32 v9, v9, 1, v10          ; pg")
    I("v_xor_b32 v9, v9, v7")
    I("v_lshlrev_b32 v8, 8, v7")
    for t in range(4):
        I(f"v_xor_b32 v10, {4*t}, v9")
        I(f"v_lshl_add_u32 {v(vKA+t)}, v10, 4, v8")
    I("v_lshrrev_b32 v9, 2, v2                ; 4g+r'")
    I("v_lshlrev_b32 v8, 8, v9")
    I("v_lshl_add_u32 v8, v6, 3, v8")
    I(f"v_add_u32 v8, {VBASE}, v8")
    I("v_and_b32 v9, 7, v9")
    for e in range(8):
        I(f"v_xor_b32 v10, {e}, v9")
        I(f"v_lshl_add_u32 {v(vVA+e)}, v10, 5, v8")
    I("v_lshrrev_b32 v9, 4, v0                ; 4w + l>>4")
    I("v_lshlrev_b32 v8, 8, v9")
    I("v_xor_b32 v10, v7, v9")
    I(f"v_lshl_add_u32 {v(vDK)}, v10, 4, v8")
    I("v_and_b32 v10, 7, v9")
    I("v_lshlrev_b32 v10, 1, v10")
    I("v_xor_b32 v10, v7, v10")
    I(f"v_lshl_add_u32 {v(vDV)}, v10, 4, v8")
    I(f"v_mov_b32 {v(vLN16)}, v3")
    I("s_waitcnt lgkmcnt(0)")
    I(f"s_add_u32 {s(sTAG)}, {s(sTAG)}, 0x9e3779b9")
    I(f"s_add_u32 {s(sTAG+1)}, {s(sTAG+1)}, 0x7f4a7c15")

def lane0_off(dst):
    return f"v_lshlrev_b32 {v(dst)}, 20, {v(vLN16)}"

def spin(sc, lab, load, check, back=None):
    I = sc.I
    I(f"s_mov_b32 {s(sSPIN)}, {SPIN}")
    I(f"{lab}:")
    I(load)
    I("s_waitcnt vmcnt(0)")
    for x in check(f"{lab}_ok"): I(x)
    I("s_sleep 2")
    I(f"s_sub_u32 {s(sSPIN)}, {s(sSPIN)}, 1")
    I(f"s_cmp_lg_u32 {s(sSPIN)}, 0")
    I(f"s_cbranch_scc1 {lab}")
    I(f"{lab}_ok:")
    if back: I(f"s_branch {back}")

def ln_handoff(sc, sfx):
    I = sc.I
    I("s_cmp_lt_u32 s4, 2")
    I(f"s_cbranch_scc0 L_ln_skip{sfx}")
    I(f"s_mul_i32 s7, {s(sHH)}, 10240")
    ln_compute(sc, LND, LNF, LNT, vLNS, sXN, 7, "LN", " sc1")
    I("s_lshl_b32 s7, s2, 1")
    I("s_add_u32 s7, s7, s4")
    I("s_lshl_b32 s7, s7, 7")
    I(f"s_add_u32 s7, s7, {F1_OFF}")
    I(lane0_off(vTMP))
    I(f"v_mov_b32 {v(vTMP+2)}, {s(sTAG)}")
    I(f"v_mov_b32 {v(vTMP+3)}, {s(sTAG+1)}")
    I("s_waitcnt vmcnt(0)")
    I(f"buffer_store_dwordx2 {v(vTMP+2,2)}, {v(vTMP)}, {s(sFL,4)}, s7 offen sc1")
    I(f"L_ln_skip{sfx}:")
    I("s_lshl_b32 s7, s6, 2")
    I("s_add_u32 s7, s7, s4")
    I("s_lshl_b32 s7, s7, 11")
    I(f"s_add_u32 s7, s7, {F1_OFF}")
    I(f"v_and_b32 {v(vTMP+1)}, 0xf0, {v(vLN16)}")
    I(f"v_lshlrev_b32 {v(vTMP+1)}, 3, {v(vTMP+1)}")
    spin(sc, f"L_s1{sfx}", f"buffer_load_dwordx2 {v(vTMP+4,2)}, {v(vTMP+1)}, {s(sFL,4)}, s7 offen sc1",
         lambda ok: [f"v_cmp_ne_u64 vcc, {s(sTAG,2)}, {v(vTMP+4,2)}", f"s_cbranch_vccz {ok}"])

def kv_dma(which, buf, m, soff_text):
    base = (KBUF[buf] if which == "K" else VBASE + VBUF[buf]) + 4096*m
    return (f"s_add_u32 m0, {s(sW1024)}, {base}", soff_text,
            f"buffer_load_dwordx4 {v(vDK if which=='K' else vDV)}, {s(sK if which=='K' else sV,4)}, {s(sT)} offen{KVF} lds")

def gemm(ffn):
    sc = Sec("gemm_ffn" if ffn else "gemm_q"); I = sc.I
    if ffn:
        steps = [(0,"G"),(0,"U"),(0,"Q0"),(0,"Q1"),(1,"G"),(1,"U"),(1,"Q0"),(1,"Q1"),
                 (2,"G"),(3,"G"),(2,"U"),(4,"G"),(3,"U"),(4,"U"),(2,"Q0"),(3,"Q0"),(4,"Q0"),(2,"Q1"),(3,"Q1"),(4,"Q1")]
        xl = {0: [(1,0,6)], 1: [(1,6,6)], 2: [(1,12,4),(2,0,2)], 3: [(2,2,6)], 4: [(2,8,6)], 5: [(2,14,2),(3,0,4)],
              6: [(3,4,6)], 7: [(3,10,6)], 8: [(4,0,8)], 9: [(4,8,8)]}
        kvsteps = list(range(11, 19))
    else:
        steps = [(c, u) for c in range(5) for u in ("Q0", "Q1")]
        xl = {0: [(1,0,12)], 1: [(1,12,4),(2,0,6)], 2: [(2,6,10)], 3: [(3,0,10)], 4: [(3,10,6),(4,0,4)], 5: [(4,4,12)]}
        kvsteps = []
    NS = len(steps)
    first_use = {}
    for t, (c, u) in enumerate(steps): first_use.setdefault(c, t)
    def accn(u, nb, j): return {"G": QF, "U": P0, "Q1": P1, "Q0": 0}[u] + 16*nb + 4*j
    def acc(u, nb, j): return (a if u == "Q0" else v)(accn(u, nb, j), 4)
    def wdma(t, m):
        c, u = steps[t]
        if u[0] == "Q": so = (128*c + 32*m)*8192 + (128 if u == "Q1" else 0); sr = sWQ; vo = vDQ
        else: so = (128*c + 32*m)*3456; sr = sW1 if u == "G" else sW3; vo = vDF
        return (f"s_add_u32 m0, {s(sW1024)}, {RING + 16384*(t%4) + 4096*m}", f"s_mov_b32 {s(sT)}, {so}",
                f"buffer_load_dwordx4 {v(vo)}, {s(sr,4)}, {s(sT)} offen{WF} lds", f"W{t}")
    def xreg(c, j, ks): return a(XF + 64*(c%3) + 16*j + 4*ks, 4)
    def xld(c, j, ks): return f"buffer_load_dwordx4 {xreg(c, j, ks)}, {v(vXOFF)}, {s(sXN,4)}, {s(sT2)} offen offset:{512*ks}{XLD}"
    def xso(c, j): return f"s_mov_b32 {s(sT2)}, {2048*c + 20480*j}"
    def aread(t, nb, ks, hf, buf):
        return f"ds_read_b64_tr_b16 {v(SS + 16*buf + 4*ks + 2*hf, 2)}, {v(vAA+nb)} offset:{16384*(t%4) + 4096*ks + 512*hf}"
    def x0():
        for j in range(4):
            I(xso(0, j))
            for ks in range(4): I(xld(0, j, ks), f"X0_{j}")
    for t in range(4):
        for m in range(4):
            x = wdma(t, m); I(x[0]); I(x[1]); I(x[2], x[3])
        if t == 0 and not OPT["lnfuse"]: x0()
    if OPT["pfc"] and OPT["lnfuse"]: code_prefetch(sc, sOUT, vTMP + 5, "f" if ffn else "q")
    a_setup2(sc)
    if not ffn: tr_setup(sc)
    if OPT["lnfuse"]:
        ln_handoff(sc, "f" if ffn else "q")
        stamp(sc, 7)
        x0()
    I("s_waitcnt @vm:W0")
    I("s_barrier")
    for ks in range(4):
        for hf in range(2): I(aread(0, 0, ks, hf, 0), "A0")
    I("s_waitcnt @vm:X0_0 lgkmcnt(0)")
    stamp(sc, 1)
    g = Gaps()
    kvq = [("K", 0, m, 0) for m in range(8)] + [("K", 1, m, 32768) for m in range(8)] + [("V", 0, m, 0) for m in range(8)]
    blk = 0; seen = set()
    for t, (c, u) in enumerate(steps):
        extra = []
        for (xc, i0, cnt) in xl.get(t, []):
            for i in range(i0, i0 + cnt):
                j, ks = divmod(i, 4)
                extra.append(((xso(xc, j),) if (ks == 0 or i == i0) else (), xld(xc, j, ks), f"X{xc}"))
        if not ffn and t in (6, 7):
            for d in tr_dma(t - 6, 40960*(t - 6)): extra.append(((d[0], d[1]), d[2], f"T{t-6}"))
        if t in kvsteps:
            i0 = 3*kvsteps.index(t)
            for (wh, bf, m, so) in kvq[i0:i0+3]:
                d = kv_dma(wh, bf, m, f"s_mov_b32 {s(sT)}, {so + 4096*m}")
                extra.append(((d[0], d[1]), d[2], "K0" if (wh == "K" and bf == 0) else "KV1"))
        for nb in range(4):
            buf = blk % 2
            k0 = len(g.m)
            for j in range(4):
                for ks in range(4):
                    d = acc(u, nb, j)
                    cc = "0" if (u not in seen and ks == 0) else d
                    g.add(f"{MF} {d}, {v(SS + 16*buf + 4*ks, 4)}, {xreg(c, j, ks)}, {cc}")
            if blk == 0:
                for j in (1, 2, 3): g.S(k0 + 4*j - 1, f"s_waitcnt @vm:X0_{j}")
            last = (t == NS-1 and nb == 3)
            if not last:
                nt, nnb = (t, nb+1) if nb < 3 else (t+1, 0)
                if nb == 3:
                    g.S(k0, f"s_waitcnt @vm:W{t+1}")
                    g.S(k0, "s_barrier")
                n = 0
                for ks in range(4):
                    for hf in range(2):
                        g.M(k0 + 1 + 2*(n//2), aread(nt, nnb, ks, hf, 1-buf), f"A{blk+1}"); n += 1
                w = "s_waitcnt lgkmcnt(0)"
                if nb == 3 and first_use[steps[t+1][0]] == t+1: w += f" @vm:X{steps[t+1][0]}"
                g.S(k0 + 15, w)
            elif ffn:
                g.S(k0, "s_waitcnt @vm:K0")
                g.S(k0, "s_barrier")
            if nb == 3 and t + 4 < NS:
                for m in range(4):
                    x = wdma(t+4, m); kk = k0 + [2, 6, 10, 13][m]
                    g.S(kk-1, x[0]); g.S(kk, x[1]); g.M(kk, x[2], x[3])
            if nb < 3:
                mine = extra[(len(extra)*nb + 2)//3:(len(extra)*(nb+1) + 2)//3]
                slots = {0: [], 1: [10], 2: [10, 14], 3: [9, 12, 14], 4: [2, 6, 10, 14]}[len(mine)]
                if blk == 0: slots = [12, 13, 14, 15][:len(mine)]
                if not ffn and nb == 0 and t in (6, 7):
                    for x in tr_src(t - 6): g.S(k0, x)
                for n, (pre, ld, tg) in enumerate(mine):
                    kk = k0 + slots[n]
                    if len(pre) == 2: g.S(kk-1, pre[0]); g.S(kk, pre[1])
                    elif len(pre) == 1: g.S(kk, pre[0])
                    g.M(kk, ld, tg)
            blk += 1
        seen.add(u)
    T = vTMP
    def qconv(grp, sp):
        ops = []; st = 2*grp + sp
        for j in range(4):
            D = QF + 16*j + 4*st
            for hb in range(2):
                A0 = accn(f"Q{grp}", 2*sp + hb, j)
                if grp == 0:
                    for r in range(4): ops.append(f"v_accvgpr_read_b32 {v(T+r)}, {a(A0+r)}")
                    A0 = T
                ops.append(f"v_cvt_pk_bf16_f32 {v(D+2*hb)}, {v(A0)}, {v(A0+1)}")
                ops.append(f"v_cvt_pk_bf16_f32 {v(D+2*hb+1)}, {v(A0+2)}, {v(A0+3)}")
        for j in range(4):
            D = QF + 16*j + 4*st
            ops.append(f"v_permlane16_swap_b32 {v(D)}, {v(D+2)}")
            ops.append(f"v_permlane16_swap_b32 {v(D+1)}, {v(D+3)}")
        return ops
    def gate_ops():
        ops = []
        for b in range(QF, QF + 64, 4):
            for e in range(4): ops.append(f"v_mul_f32 {v(T+e)}, {s(sGS)}, {v(b+e)}")
            for e in range(4): ops.append(f"v_exp_f32 {v(T+e)}, {v(T+e)}")
            for e in range(4): ops.append(f"v_fma_f32 {v(T+e)}, {v(T+e)}, {s(sC2)}, {s(sC2)}")
            for e in range(4): ops.append(f"v_rcp_f32 {v(T+e)}, {v(T+e)}")
            for e in range(4): ops.append(f"v_mul_f32 {v(b+e)}, {v(b+e)}, {v(T+e)}")
        return ops
    def h_ops():
        ops = []
        for fs in range(2):
            for j in range(4):
                src = [16*(2*fs + hb) + 4*j + r for hb in range(2) for r in range(4)]
                for e in range(8): ops.append(f"v_mul_f32 {v(QF+src[e])}, {v(QF+src[e])}, {v(P0+src[e])}")
                D = P0 + src[0]
                for e in range(4): ops.append(f"v_cvt_pk_bf16_f32 {v(D+e)}, {v(QF+src[2*e])}, {v(QF+src[2*e+1])}")
                so = "0" if fs == 0 else s(sC4096)
                ops.append(f"buffer_store_dwordx4 {v(D,4)}, {v(vHOFF)}, {s(sH,4)}, {so} offen offset:{1024*j} sc1")
        return ops
    n = len(g.m)
    if ffn:
        k = g.fill(gate_ops(), 64*12 + 4)
        print("   gate ops end at gap", k, "of", n, file=sys.stderr)
        k = g.fill(h_ops(), max(k, 64*14 + 4), force_by=n - 64)
        print("   h ops end at gap", k, file=sys.stderr)
        rest = qconv(0, 0) + qconv(0, 1)
        k = g.fill(rest, max(k, 64*17 + 4), force_by=n - 14)
        k = g.fill(qconv(1, 0), max(k, n - 32 + 4), force_by=n)
    else:
        k = g.fill(qconv(0, 0) + qconv(0, 1), n - 64 + 4, force_by=n - 14)
        k = g.fill(qconv(1, 0), max(k, n - 32 + 4), force_by=n)
    g.emit(sc)
    if ffn:
        for t in range(4): I(kread(KF, 0, 0, t))
        I("s_nop 1")
    else: I("s_nop 5")
    for o in qconv(1, 1): I(o)
    stamp(sc, 2)
    return sc

def tr_setup(sc):
    I = sc.I
    srd(sc, sWT, pWS, size=8*WT_CT, lit_off=WT_OFF)
    I(f"s_mov_b32 s67, {4096*1280}")
    I(f"s_mov_b32 {s(sSRC+3)}, 0x20000")
    I(f"v_lshrrev_b32 v9, 8, {v(vDV)}")
    I(f"v_and_b32 v10, 0xff, {v(vDV)}")
    I(f"v_mul_u32_u24 {v(vTD)}, 1280, v9")
    I(f"v_add_u32 {v(vTD)}, {v(vTD)}, v10")
def tr_src(r):
    return [f"s_add_u32 {s(sU)}, {s(sTW)}, {40*r}",
            f"s_cmp_lt_u32 {s(sU)}, 54",
            f"s_cselect_b32 {s(sSRC)}, {s(pW2)}, {s(pWO)}",
            f"s_cselect_b32 {s(sSRC+1)}, {s(pW2+1)}, {s(pWO+1)}",
            f"s_cselect_b32 {s(sSRC+2)}, {1728*1280}, s67",
            f"s_cselect_b32 s66, 0, 54",
            f"s_sub_u32 s66, {s(sU)}, s66",
            f"s_mul_i32 s66, s66, 40960"]
def tr_dma(r, lds):
    return [(f"s_add_u32 m0, {s(sW1024)}, {lds + 8192*sg + 4096*hi}", f"s_add_u32 {s(sT)}, s66, {256*sg + 20480*hi}",
             f"buffer_load_dwordx4 {v(vTD)}, {s(sSRC,4)}, {s(sT)} offen lds") for sg in range(5) for hi in range(2)]

def transposer():
    sc = Sec("transp"); I = sc.I
    T = P0
    def issue(r, lds):
        for x in tr_src(r): I(x)
        for d in tr_dma(r, lds):
            I(d[0]); I(d[1]); I(d[2], f"T{r}")
    I("s_waitcnt @vm:T1")
    I("s_barrier")
    issue(2, 81920); issue(3, 122880)
    I(f"v_subrev_u32 {v(T)}, {VBASE}, {v(vVA)}")
    I("s_mul_i32 s3, s4, 10")
    for i in range(10):
        I(f"s_add_u32 s7, s3, {i}")
        I(f"s_and_b32 {s(sT)}, s7, 7")
        I(f"s_lshl_b32 {s(sT)}, {s(sT)}, 5")
        I(f"s_lshr_b32 s7, s7, 3")
        I(f"s_lshl_b32 s7, s7, 13")
        I(f"s_or_b32 s7, s7, {s(sT)}")
        I(f"v_xor_b32 {v(T+6+i)}, s7, {v(T)}")
    I(f"s_mul_i32 s7, s4, {2*WT_CT}")
    I(f"v_add_u32 {v(T+2)}, s7, {v(vLN16)}")
    I(f"v_add_u32 {v(T+3)}, {WT_CT}, {v(T+2)}")
    I(f"v_add_u32 {v(T+4)}, 4096, {v(T+2)}")
    I(f"v_add_u32 {v(T+5)}, 4096, {v(T+3)}")
    cur = [0]
    def proc(r, lds):
        I(f"s_add_u32 {s(sU)}, {s(sTW)}, {40*r}")
        I(f"s_mul_i32 {s(sT2)}, {s(sU)}, 5120")
        if r == 4:
            I(f"s_cmp_ge_u32 {s(sU)}, 182")
            I(f"s_cbranch_scc1 L_tr_done")
        base = lds if lds <= 40960 else lds - 81920
        want = lds - base
        if want != cur[0]:
            for i in range(10): I(f"v_add_u32 {v(T+6+i)}, {want - cur[0]}, {v(T+6+i)}")
            cur[0] = want
        D = T + 16 + 40*(r % 2)
        for half in range(2):
            for nbi in range(5):
                for hf in range(2):
                    I(f"ds_read_b64_tr_b16 {v(D + 20*half + 4*nbi + 2*hf, 2)}, {v(T+6+5*half+nbi)} offset:{base + 4096*hf}")
            I("s_waitcnt lgkmcnt(0)")
            for nbi in range(5):
                vo = v(T+2+half) if nbi < 4 else v(T+4+half)
                I(f"buffer_store_dwordx4 {v(D + 20*half + 4*nbi, 4)}, {vo}, {s(sWT,4)}, {s(sT2)} offen offset:{1024*(nbi%4)} sc1")
    proc(0, 0); proc(1, 40960)
    I("s_barrier")
    issue(4, 40960)
    for m in range(8):
        d = kv_dma("K", 0, m, f"s_mov_b32 {s(sT)}, {4096*m}")
        I(d[0]); I(d[1]); I(d[2], "K0")
    I("s_waitcnt @vm:T3")
    I("s_barrier")
    proc(2, 81920); proc(3, 122880)
    I("s_waitcnt @vm:K0")
    I("s_barrier")
    proc(4, 40960)
    I("L_tr_done:")
    I("s_barrier")
    for m in range(8):
        for x in kv_dma("K", 1, m, f"s_mov_b32 {s(sT)}, {32768 + 4096*m}"): I(x)
    for m in range(8):
        for x in kv_dma("V", 0, m, f"s_mov_b32 {s(sT)}, {4096*m}"): I(x)
    for t in range(4): I(kread(KF, 0, 0, t))
    return sc

def kread(dst, buf, blk, t): return f"ds_read_b128 {a(dst + 4*t, 4)}, {v(vKA+t)} offset:{KBUF[buf] + 4096*blk}"
def vread(dst, buf, e, p, u): return f"ds_read_b64_tr_b16 {a(dst + 4*p + 2*u, 2)}, {v(vVA+e)} offset:{VBUF[buf] + 8192*p + 4096*u}"
def preg(P, p, j): return P + 16*j + 4*p
def pcvt(P, blk, j, hf):
    return f"v_cvt_pk_bf16_f32 {v(preg(P, blk//2, j) + 2*(blk%2) + hf)}, {v(SS + 4*j + 2*hf)}, {v(SS + 4*j + 2*hf + 1)}"
def sexp(j, r): return f"v_exp_f32 {v(SS + 4*j + r)}, {v(SS + 4*j + r)}"
def qk_group(g, kf, czero=False):
    k0 = len(g.m)
    for j in range(4):
        for t in range(4):
            c = ("0" if czero else v(NEGM + 4*j, 4)) if t == 0 else v(SS + 4*j, 4)
            g.add(f"{MF} {v(SS + 4*j, 4)}, {a(kf + 4*t, 4)}, {v(QF + 16*j + 4*t, 4)}, {c}")
    return k0
def pv_group(g, e, vf, P, first):
    k0 = len(g.m)
    for j in range(4):
        for p in range(4):
            d = a(OA + 16*e + 4*j, 4)
            g.add(f"{MF} {d}, {a(vf + 4*p, 4)}, {v(preg(P, p, j), 4)}, {'0' if (first and p == 0) else d}")
    return k0
def sum_group(g, P, first):
    k0 = len(g.m)
    for j in range(4):
        for p in range(4):
            d = a(LA + 4*j, 4)
            g.add(f"{MF} {d}, {a(ONES, 4)}, {v(preg(P, p, j), 4)}, {'0' if (first and p == 0) else d}")
    return k0
def soft4(g, k, P, blk, j):
    for r in range(4): g.V(k + 2*r, sexp(j, r))
    g.V(k + 3, pcvt(P, blk, j, 0)); g.V(k + 7, pcvt(P, blk, j, 1))

def rowmax_finish(sc, src):
    I = sc.I
    T = vTMP
    for swap in ("v_permlane16_swap_b32", "v_permlane32_swap_b32"):
        for j in range(4): I(f"v_mov_b32 {v(T+j)}, {v(src+j)}")
        I("s_nop 0")
        for j in range(4): I(f"{swap} {v(src+j)}, {v(T+j)}")
        for j in range(4): I(f"v_max_f32 {v(src+j)}, {v(src+j)}, {v(T+j)}")
    for j in range(4):
        for r in range(4): I(f"v_sub_f32 {v(NEGM + 4*j + r)}, 0, {v(src+j)}")

def standin():
    sc = Sec("standin"); I = sc.I
    I("L_a_attn:")
    I(f"v_mov_b32 {v(vTMP)}, 0x3f803f80")
    I("s_waitcnt lgkmcnt(0)")
    g = Gaps(); qk_group(g, KF, czero=True)
    ops = [f"v_accvgpr_write_b32 {a(ONES+r)}, {v(vTMP)}" for r in range(4)]
    for jj in range(4):
        g.S(2*jj, f"s_add_u32 s3, s4, {jj}"); g.S(2*jj, "s_and_b32 s3, s3, 3"); g.S(2*jj, "s_lshl_b32 s3, s3, 10")
        g.S(2*jj+1, "s_lshl_b32 s7, s4, 12"); g.S(2*jj+1, "s_add_u32 s3, s3, s7")
        g.V(2*jj+1, f"v_add_u32 {v(vB+jj)}, s3, {v(vLN16)}")
    g.S(8, "s_mul_i32 s3, s4, 5120")
    g.V(8, f"v_add_u32 {v(vA)}, s3, {v(vLN16)}")
    g.V(8, f"v_add_u32 {v(vA+1)}, 4096, {v(vA)}")
    for r in range(4): g.V(9 + r//2, ops[r])
    for j in range(2):
        g.V(12 + 2*j, f"v_max3_f32 {v(P1+j)}, {v(SS+4*j)}, {v(SS+4*j+1)}, {v(SS+4*j+2)}")
        g.V(12 + 2*j, f"v_max_f32 {v(P1+j)}, {v(P1+j)}, {v(SS+4*j+3)}")
    g.emit(sc)
    I("s_nop 1")
    for j in (2, 3):
        if j == 3: I("s_nop 3")
        I(f"v_max3_f32 {v(P1+j)}, {v(SS+4*j)}, {v(SS+4*j+1)}, {v(SS+4*j+2)}")
        I(f"v_max_f32 {v(P1+j)}, {v(P1+j)}, {v(SS+4*j+3)}")
    rowmax_finish(sc, P1)
    return sc

def prephase():
    sc = Sec("pre"); I = sc.I
    I("L_a_pre:")
    I(f"s_mov_b32 {s(sKOFF)}, 32768")
    I(f"s_mov_b32 {s(sCNT)}, 7")
    g = Gaps()
    for blk in range(8):
        kf = KF if blk % 2 == 0 else VF
        k0 = qk_group(g, kf)
        if blk < 7:
            for t in range(4): g.M(k0 + 3 + (t//2)*4, kread(VF if blk % 2 == 0 else KF, 0, blk+1, t))
            g.S(k0 + 15, "s_waitcnt lgkmcnt(0)")
        else:
            g.S(k0, "s_waitcnt vmcnt(0)")
            g.S(k0, "s_barrier")
            g.M(k0 + 3, f"buffer_atomic_add {v(vTMP+1)}, {v(vTMP)}, {s(sDBG,4)}, s3 offen sc1")
    g.V(0, lane0_off(vTMP)); g.V(1, f"v_mov_b32 {v(vTMP+1)}, 1")
    g.S(0, f"s_or_b32 s3, s4, {s(sRETRY)}"); g.S(1, "s_lshl_b32 s3, s3, 12")
    L = [f"s_mul_i32 s7, {s(sRTB)}, {H_RT}"] + srd_l(sHB, pWS, off_lo=7, size=H_RT, lit_off=H_OFF)
    L += [f"s_mul_i32 s7, {s(sCT)}, {WT_CT}"] + srd_l(sW2, pWS, off_lo=7, size=54*5120, lit_off=WT_OFF)
    L += srd_l(sWO, pWS, off_lo=7, size=128*5120, lit_off=WT_OFF + 54*5120)
    L += [f"s_lshl_b32 s7, {s(sRTB)}, 19"] + srd_l(sOB, pWS, off_lo=7, size=O_RT, lit_off=O_OFF)
    L += [f"s_mul_i32 s7, {s(sRTB)}, 81920", f"s_mul_i32 {s(sT)}, {s(sCT)}, 160", f"s_add_u32 s7, s7, {s(sT)}"]
    L += srd_l(sX, pX, off_lo=7, size=f"s_sub_u32 {s(sX+2)}, {2048*1280}, s7")
    L += srd_l(sOUT, pOUT, off_lo=7, size=f"s_sub_u32 {s(sOUT+2)}, {2048*1280}, s7")
    k = 16
    for x in L:
        while g.sh[k]: k += 1
        g.S(k, x)
    assert k < 112
    for n in range(30):
        blk, j = divmod(n, 4)
        for r in range(4): g.V(4*n + 8 + r, sexp(j, r))
        g.V(4*n + 11, pcvt(P0, blk, j, 0)); g.V(4*n + 11, pcvt(P0, blk, j, 1))
    g.emit(sc)
    for r in range(4): I(sexp(2, r))
    I(pcvt(P0, 7, 2, 0)); I(pcvt(P0, 7, 2, 1))
    stamp(sc, 3)
    return sc

def period(par, first=False, name=None, loop_end=None):
    sc = Sec(name); I = sc.I
    Pc, Pn = (P0, P1) if par == 0 else (P1, P0)
    kb = 1 - par; vb = par
    g = Gaps()
    dm = []
    for m in range(8):
        dm.append(kv_dma("V", 1-par, m, f"s_add_u32 {s(sT)}, {s(sKOFF)}, {4096*m}"))
        dm.append(kv_dma("K", par, m, f"s_add_u32 {s(sT)}, {s(sKOFF)}, {32768 + 4096*m}"))
    def put_dma(k):
        if not dm: return
        d = dm.pop(0)
        g.S(k-1, d[0]); g.S(k, d[1]); g.M(k, d[2])
    k0 = sum_group(g, Pc, first)
    soft4(g, k0, Pc, 7, 3)
    for t in range(4): g.M(k0 + [1, 3, 5, 7][t], kread(KF, kb, 0, t))
    for k in (5, 9, 13): put_dma(k0 + k)
    g.S(k0 + 15, "s_waitcnt lgkmcnt(0)")
    for blk in range(8):
        k0 = qk_group(g, KF)
        if blk > 0: soft4(g, k0, Pn, blk-1, 3)
        soft4(g, k0 + 8, Pn, blk, 0)
        gp = [1, 1, 3, 5, 5, 7, 9, 9]
        for n in range(8): g.M(k0 + gp[n], vread(VF, vb, blk, n//2, n%2))
        put_dma(k0 + 13)
        g.S(k0 + 15, "s_waitcnt lgkmcnt(4)")
        k0 = pv_group(g, blk, VF, Pc, first)
        g.S(k0 + 1, "s_waitcnt lgkmcnt(0)")
        soft4(g, k0, Pn, blk, 1)
        soft4(g, k0 + 8, Pn, blk, 2)
        if blk < 7:
            for t in range(4): g.M(k0 + [1, 3, 5, 7][t], kread(KF, kb, blk+1, t))
            for k in (9, 13): put_dma(k0 + k)
            if blk == 4 and loop_end: g.M(k0 + 13, f"buffer_load_dword {v(vPOLL)}, off, {s(sDBG,4)}, 0 sc1")
            g.S(k0 + 15, "s_waitcnt lgkmcnt(0)")
        else:
            g.S(k0 + 9, "s_waitcnt vmcnt(0)")
            g.S(k0 + 9, "s_barrier")
            g.S(k0 + 11, f"s_add_u32 {s(sKOFF)}, {s(sKOFF)}, 32768")
            if loop_end:
                g.S(k0 + 13, f"s_sub_u32 {s(sCNT)}, {s(sCNT)}, 1")
                g.S(k0 + 14, f"s_cmp_lg_u32 {s(sCNT)}, 0")
    assert not dm
    g.emit(sc)
    if loop_end: I(f"s_cbranch_scc1 {loop_end}")
    return sc

NST = 7; NS_B = 46
RF = [a(180 + 4*i, 4) for i in range(18)] + [v(QF + 4*i, 4) for i in range(16)] + [v(NEGM + 4*i, 4) for i in range(2)] \
     + [v(P1 + 4*i, 4) for i in range(16)] + [v(P0 + 4*i, 4) for i in range(11)]
def frag(n, f): return RF[9*(n % NST) + f]
def bloads(n):
    i = n if n < 14 else n - 14
    sb, sa = (sHB, sW2) if n < 14 else (sOB, sWO)
    L = []
    for f in [0, 1, 5, 2, 6, 3, 7, 4, 8]:
        if f < 5: L.append(f"buffer_load_dwordx4 {frag(n, f)}, {v(vA + f//4)}, {s(sa,4)}, {s(sA)} offen offset:{1024*(f%4)}{LD}")
        else: L.append(f"buffer_load_dwordx4 {frag(n, f)}, {v(vB+f-5)}, {s(sb,4)}, {s(sB)} offen{LD}")
    return [f"s_mov_b32 {s(sA)}, {20480*i}", f"s_mov_b32 {s(sB)}, {16384*i}"], L
def put_stage(g, n, k0, k1):
    pre, L = bloads(n)
    pos = [k0 + (m*(k1 - k0))//9 for m in range(9)]
    g.S(pos[0], pre[0]); g.S(pos[1], pre[1])
    for p_, t in zip(pos, L): g.M(p_, t, f"S{n}")

def final():
    sc = Sec("final"); I = sc.I
    stamp(sc, 4)
    g = Gaps()
    Pc = P1; vb = 1
    k0 = sum_group(g, Pc, False)
    soft4(g, k0, Pc, 7, 3)
    gp = [1, 1, 3, 5, 5, 7, 9, 9]
    for n in range(8): g.M(k0 + gp[n], vread(VF, vb, 0, n//2, n%2))
    g.S(k0 + 15, "s_waitcnt lgkmcnt(0)")
    g.V(8, f"v_readfirstlane_b32 s3, {v(vPOLL)}")
    g.S(10, "s_cmp_lt_u32 s3, 256"); g.S(10, "s_cbranch_scc1 L_s2"); g.S(10, "L_s2_back:")
    ks = []
    for e in range(8):
        vf = VF if e % 2 == 0 else KF
        k0 = pv_group(g, e, vf, Pc, False); ks.append(k0)
        if e < 7:
            for n in range(8): g.M(k0 + 1 + n, vread(KF if e % 2 == 0 else VF, vb, e+1, n//2, n%2))
            g.S(k0 + 15, "s_waitcnt lgkmcnt(0)")
    put_stage(g, 0, 11, ks[1] + 8); put_stage(g, 1, ks[1] + 8, ks[3] + 8)
    put_stage(g, 2, ks[4], ks[6]); put_stage(g, 3, ks[6], ks[7] + 16)
    RI = vTMP
    ops = []
    for j in range(4): ops.append(f"v_accvgpr_read_b32 {v(SS+j)}, {a(LA + 4*j)}")
    for j in range(4): ops.append(f"v_rcp_f32 {v(RI+j)}, {v(SS+j)}")
    ops.append(f"v_add_f32 {v(SS+5)}, {v(SS)}, {v(SS+1)}")
    ops.append(f"v_add_f32 {v(SS+5)}, {v(SS+5)}, {v(SS+2)}")
    ops.append(f"v_add_f32 {v(SS+5)}, {v(SS+5)}, {v(SS+3)}")
    ops.append(f"v_cmp_ngt_f32 vcc, {f32(2.0**64)}, {v(SS+5)}")
    ops.append(f"v_mov_b32 {v(SS+4)}, {FLAGS}")
    k = g.fill(ops, ks[0] + 4, force_by=ks[1] + 6)
    k = ks[1] + 7
    g.S(k, "s_cmp_lg_u64 vcc, 0"); g.S(k, "s_cselect_b32 s3, 1, 0"); g.S(k+1, "s_lshl_b32 s7, s4, 2")
    g.V(k+2, f"v_mov_b32 {v(SS+6)}, s3"); g.V(k+2, f"v_add_u32 {v(SS+7)}, s7, {v(SS+4)}")
    g.M(k+4, f"ds_write_b32 {v(SS+7)}, {v(SS+6)}")
    g.S(ks[2], "s_barrier")
    g.M(ks[2] + 9, f"ds_read_b128 {v(SS+8,4)}, {v(SS+4)}")
    k = ks[3]
    g.V(k, f"v_or3_b32 {v(SS+8)}, {v(SS+8)}, {v(SS+9)}, {v(SS+10)}"); g.V(k, f"v_or_b32 {v(SS+8)}, {v(SS+8)}, {v(SS+11)}")
    g.V(k+1, f"v_readfirstlane_b32 s3, {v(SS+8)}")
    g.S(k+3, f"s_andn2_b32 s3, s3, {s(sRETRY)}"); g.S(k+3, "s_cbranch_scc1 L_a_truemax")
    def oconv(st):
        ops = []
        for j in range(4):
            b = P0 + 12*j
            src = [OA + 16*(2*st + hb) + 4*j + r for hb in range(2) for r in range(4)]
            for e in range(8): ops.append(f"v_accvgpr_read_b32 {v(b+e)}, {a(src[e])}")
            for e in range(8): ops.append(f"v_mul_f32 {v(b+e)}, {v(b+e)}, {v(RI+j)}")
            for e in range(4): ops.append(f"v_cvt_pk_bf16_f32 {v(b+8+e)}, {v(b+2*e)}, {v(b+2*e+1)}")
            so = "0" if st == 0 else s(sC4096 + st - 1)
            ops.append(f"buffer_store_dwordx4 {v(b+8,4)}, {v(vOOFF)}, {s(sO,4)}, {so} offen offset:{1024*j} sc1")
        return ops
    for st in range(3): g.spread(oconv(st), ks[2*st+2] + 4, ks[2*st+3] + 16)
    g.emit(sc)
    for o in oconv(3): I(o, "OST" if "store" in o else None)
    stamp(sc, 5)
    return sc

def outphase():
    sc = Sec("outp"); I = sc.I
    vXO, vWR, vRD, vF3 = vKA, vKA + 1, vVA, vVA + 1
    vPL = vVA + 2
    vTG = vVA + 4
    XR = P0 + 44
    GA = 160; T = SS
    def accr(set_, nbi, jj): return 80*set_ + 20*jj + 4*nbi
    g = Gaps(); kst = []
    for n in range(NS_B):
        set_ = 0 if n < 14 else 1
        k0 = len(g.m); kst.append(k0)
        for jj in ((0, 1, 2, 3) if n < NS_B - 1 else (1, 2, 3, 0)):
            for nbi in range(5):
                d = a(accr(set_, nbi, jj), 4)
                g.add(f"{MF} {d}, {frag(n, nbi)}, {frag(n, 5+jj)}, {'0' if n in (0, 14) else d}")
    kst.append(len(g.m))
    slow = [30, 34, 38][:4 - OPT["laend"]]
    n = 0; ip = 4; issue_at = {}
    while ip < NS_B:
        span = 2 if n in slow else 1
        put_stage(g, ip, kst[n] + 1, kst[n + span] - 1); issue_at[ip] = n
        ip += 1; n += span
    for n in range(NS_B - 1): g.S(kst[n+1] - 1, f"s_waitcnt @vm:S{n+1}")
    ops = [f"v_bfe_u32 {v(T)}, {v(vLN16)}, 4, 4", f"v_lshrrev_b32 {v(T+1)}, 8, {v(vLN16)}",
           f"v_mul_u32_u24 {v(vXO)}, 1280, {v(T)}", f"v_lshl_add_u32 {v(vXO)}, {v(T+1)}, 3, {v(vXO)}",
           f"v_and_b32 {v(vF3)}, 0x1f0, {v(vLN16)}", f"v_lshlrev_b32 {v(vF3)}, 3, {v(vF3)}",
           f"v_mov_b32 {v(vTG)}, {s(sTAG)}", f"v_mov_b32 {v(vTG+1)}, {s(sTAG+1)}", lane0_off(vTG+2)]
    g.fill(ops, 0, force_by=20)
    k = kst[1]
    g.S(k + 4, "s_mul_i32 s3, s4, 20480"); g.V(k + 4, f"v_add_u32 {v(vXO)}, s3, {v(vXO)}")
    g.S(k + 6, "s_mul_i32 s3, s4, 30720"); g.V(k + 6, f"v_add_u32 {v(vRD)}, s3, {v(vLN16)}")
    for jj in (1, 2, 3):
        kk = k + 6 + 2*jj
        g.S(kk, f"s_add_u32 s3, s4, {jj}"); g.S(kk, "s_and_b32 s3, s3, 3"); g.S(kk, "s_mul_i32 s3, s3, 30720"); g.S(kk, f"s_add_u32 s3, s3, {5120*(jj-1)}")
        g.V(kk, f"v_add_u32 {v(vWR+jj-1)}, s3, {v(vLN16)}")
    k = kst[2]
    for x in ("s_lshl_b32 s3, s6, 2", "s_add_u32 s3, s3, s4", "s_lshl_b32 s3, s3, 5", "s_add_u32 s3, s3, s5", "s_lshl_b32 s3, s3, 7",
              f"s_add_u32 s3, s3, {F3_OFF}", "s_waitcnt @vm:OST"): g.S(k, x)
    g.M(k, f"buffer_store_dwordx2 {v(vTG,2)}, {v(vTG+2)}, {s(sFL,4)}, s3 offen sc1")
    g.S(kst[3], "s_barrier")
    n14 = issue_at[14]
    k = kst[n14 - 1]
    g.S(k, f"s_lshl_b32 {s(sT)}, {s(sRTB)}, 12"); g.S(k, f"s_add_u32 {s(sT)}, {s(sT)}, {F3_OFF}")
    poll = f"buffer_load_dwordx2 {v(vPL,2)}, {v(vF3)}, {s(sFL,4)}, {s(sT)} offen sc1"
    g.M(k, poll, "PL")
    k = kst[n14]
    g.S(k, "s_waitcnt @vm:PL")
    g.V(k, f"v_cmp_ne_u64 vcc, {s(sTAG,2)}, {v(vPL,2)}"); g.V(k, "s_cbranch_vccnz L_s3"); g.V(k, "L_s3_back:")
    k = kst[n14 + 1]
    for x in (f"s_or_b32 s3, s4, {s(sHH)}", "s_lshl_b32 s3, s3, 20", "s_lshl_b32 s7, s6, 7", "s_add_u32 s3, s3, s7"): g.S(k, x)
    g.M(k, f"buffer_store_dwordx2 {v(vTG,2)}, {v(vTG+2)}, {s(sFL,4)}, s3 offen sc1")
    for nbi in range(5): g.M(kst[31] + 2*nbi, f"buffer_load_dwordx2 {v(XR+2*nbi,2)}, {v(vXO)}, {s(sX,4)}, 0 offen offset:{32*nbi}", "XT")
    def redwrite(set_):
        return [f"ds_write_b128 {v(vWR+jj-1)}, {a(accr(set_, nbi, jj), 4)} offset:{15360*set_ + 1024*nbi}" for jj in (1, 2, 3) for nbi in range(5)]
    for m, t in enumerate(redwrite(0)): g.M(kst[15 + m//8] + 2*(m % 8), t)
    g.S(kst[18], "s_waitcnt lgkmcnt(0)"); g.S(kst[18], "s_barrier")
    for nbi in range(5):
        k0 = kst[19 + nbi]
        for sr in range(3): g.M(k0 + 2*sr, f"ds_read_b128 {v(T + 4 + 4*sr, 4)}, {v(vRD)} offset:{5120*sr + 1024*nbi}")
        g.S(k0 + 10, "s_waitcnt lgkmcnt(0)")
        ops = []
        for r in range(4): ops.append(f"v_accvgpr_read_b32 {v(T+r)}, {a(accr(0, nbi, 0) + r)}")
        for sr in range(3):
            for r in range(4): ops.append(f"v_add_f32 {v(T+r)}, {v(T+r)}, {v(T+4+4*sr+r)}")
        for r in range(4): ops.append(f"v_mul_f32 {v(T+4+r)}, {s(sNL2E)}, {v(T+r)}")
        for r in range(4): ops.append(f"v_exp_f32 {v(T+4+r)}, {v(T+4+r)}")
        for r in range(4): ops.append(f"v_add_f32 {v(T+4+r)}, 1.0, {v(T+4+r)}")
        for r in range(4): ops.append(f"v_rcp_f32 {v(T+4+r)}, {v(T+4+r)}")
        for r in range(4): ops.append(f"v_mul_f32 {v(T+r)}, {v(T+r)}, {v(T+4+r)}")
        for r in range(4): ops.append(f"v_accvgpr_write_b32 {a(GA + 4*nbi + r)}, {v(T+r)}")
        g.spread(ops, k0 + 10, k0 + 20)
    I("s_waitcnt @vm:S0")
    rw = redwrite(1); kl = kst[NS_B - 1]
    for m in range(6): g.M(kl + 14 + m, rw[m])
    g.emit(sc)
    stamp(sc, 6)
    for t in rw[6:]: I(t)
    F = P1
    for i in range(20): I(f"v_accvgpr_read_b32 {v(F+20+i)}, {a(GA + i)}")
    I("s_mov_b32 s3, 0xffff0000")
    I("s_waitcnt @vm:XT")
    for nbi in range(5):
        for h2 in range(2):
            I(f"v_lshlrev_b32 {v(F + 40 + 4*nbi + 2*h2)}, 16, {v(XR + 2*nbi + h2)}")
            I(f"v_and_b32 {v(F + 41 + 4*nbi + 2*h2)}, s3, {v(XR + 2*nbi + h2)}")
    I("s_waitcnt lgkmcnt(0)")
    I("s_barrier")
    R_ = QF
    for nbi in range(5):
        for sr in range(3): I(f"ds_read_b128 {v(R_ + 12*nbi + 4*sr, 4)}, {v(vRD)} offset:{15360 + 5120*sr + 1024*nbi}", f"R{nbi}")
    for i in range(20): I(f"v_accvgpr_read_b32 {v(F+i)}, {a(accr(1, 0, 0) + i)}")
    for nbi in range(5):
        I(f"s_waitcnt @lg:R{nbi}")
        for sr in range(3):
            for h2 in range(2):
                I(f"v_pk_add_f32 {v(F + 4*nbi + 2*h2, 2)}, {v(F + 4*nbi + 2*h2, 2)}, {v(R_ + 12*nbi + 4*sr + 2*h2, 2)}")
        for h2 in range(2):
            I(f"v_pk_fma_f32 {v(F + 4*nbi + 2*h2, 2)}, {v(F + 4*nbi + 2*h2, 2)}, {v(F + 20 + 4*nbi + 2*h2, 2)}, {v(F + 40 + 4*nbi + 2*h2, 2)}")
        for h2 in range(2):
            I(f"v_cvt_pk_bf16_f32 {v(XR + 2*nbi + h2)}, {v(F + 4*nbi + 2*h2)}, {v(F + 4*nbi + 2*h2 + 1)}")
        I(f"buffer_store_dwordx2 {v(XR+2*nbi,2)}, {v(vXO)}, {s(sOUT,4)}, 0 offen offset:{32*nbi}")
    if OPT["stamp"]:
        stamp(sc, 8)
        I("s_waitcnt vmcnt(0)")
        stamp(sc, 9)
        srd(sc, sOUT, pWS, size=1024*256, lit_off=ST_OFF)
        I(f"s_lshl_b32 s3, s2, 10")
        I(f"s_lshl_b32 s7, s4, 8")
        I("s_add_u32 s3, s3, s7")
        I(f"v_lshrrev_b32 v251, 2, {v(vLN16)}")
        I(f"buffer_store_dword v255, v251, {s(sOUT,4)}, s3 offen")
    I("L_a_end:")
    I("s_endpgm")
    s2 = Sec("s2"); s2.I("L_s2:")
    spin(s2, "L_s2l", f"buffer_load_dword {v(vPOLL)}, off, {s(sDBG,4)}, 0 sc1",
         lambda ok: [f"v_readfirstlane_b32 s3, {v(vPOLL)}", "s_nop 3", "s_cmp_ge_u32 s3, 256", f"s_cbranch_scc1 {ok}"], back="L_s2_back")
    s3 = Sec("s3"); s3.I("L_s3:")
    if OPT["stamp"]: stamp(s3, 10)
    spin(s3, "L_s3l", poll, lambda ok: [f"v_cmp_ne_u64 vcc, {s(sTAG,2)}, {v(vPL,2)}", f"s_cbranch_vccz {ok}"])
    if OPT["stamp"]: stamp(s3, 11)
    s3.I("s_branch L_s3_back")
    return sc, s2, s3

def truemax():
    s1 = Sec("tm_a"); I = s1.I
    MX = P1
    I("L_a_truemax:")
    I("s_waitcnt vmcnt(0) lgkmcnt(0)")
    I(f"s_mov_b32 {s(sRETRY)}, 1")
    I("s_nop 7")
    for j in range(4): I(f"v_mov_b32 {v(MX+j)}, 0xff800000")
    I(f"s_mov_b32 {s(sKOFF)}, 0")
    s2 = Sec("tm_b"); I = s2.I
    I("L_tm_tile:")
    I("s_barrier")
    for m in range(8):
        for x in kv_dma("K", 0, m, f"s_add_u32 {s(sT)}, {s(sKOFF)}, {4096*m}"): I(x)
    I("s_waitcnt vmcnt(0)")
    I("s_barrier")
    for t in range(4): I(f"v_mov_b32 {v(P0+t)}, {v(vKA+t)}")
    I(f"s_mov_b32 {s(sCNT)}, 8")
    s3 = Sec("tm_c"); I = s3.I
    I("L_tm_blk:")
    for t in range(4): I(f"ds_read_b128 {a(KF + 4*t, 4)}, {v(P0+t)}")
    for t in range(4): I(f"v_add_u32 {v(P0+t)}, 4096, {v(P0+t)}")
    I("s_waitcnt lgkmcnt(0)")
    g = Gaps(); qk_group(g, KF, czero=True); g.emit(s3)
    I("s_nop 7")
    for j in range(4):
        I(f"v_max3_f32 {v(MX+j)}, {v(MX+j)}, {v(SS+4*j)}, {v(SS+4*j+1)}")
        I(f"v_max3_f32 {v(MX+j)}, {v(MX+j)}, {v(SS+4*j+2)}, {v(SS+4*j+3)}")
    I(f"s_sub_u32 {s(sCNT)}, {s(sCNT)}, 1")
    I(f"s_cmp_lg_u32 {s(sCNT)}, 0")
    I("s_cbranch_scc1 L_tm_blk")
    s4 = Sec("tm_d"); I = s4.I
    I(f"s_add_u32 {s(sKOFF)}, {s(sKOFF)}, 32768")
    I(f"s_cmp_lt_u32 {s(sKOFF)}, 524288")
    I("s_cbranch_scc1 L_tm_tile")
    s5 = Sec("tm_e"); I = s5.I
    I("s_barrier")
    for bf in range(2):
        for m in range(8):
            for x in kv_dma("K", bf, m, f"s_mov_b32 {s(sT)}, {32768*bf + 4096*m}"): I(x)
    for m in range(8):
        for x in kv_dma("V", 0, m, f"s_mov_b32 {s(sT)}, {4096*m}"): I(x)
    rowmax_finish(s5, MX)
    I("s_waitcnt vmcnt(0)")
    I("s_barrier")
    for t in range(4): I(kread(KF, 0, 0, t))
    I("s_waitcnt lgkmcnt(0)")
    I("s_branch L_a_pre")
    return [s1, s2, s3, s4, s5]

def upto(sec, text):
    x = Sec(sec.name + "_cut")
    for i in sec.ins:
        x.ins.append(i)
        if text in i.text: return x
    raise ValueError(text)

def gen_main():
    st = a_setup()
    st.I(f"s_cmp_ge_u32 {s(sHH)}, 27")
    st.I("s_cbranch_scc1 L_a_noffn")
    g1 = gemm(True)
    si = standin(); pre = prephase()
    p0 = period(0, first=True, name="p0")
    lp = Sec("lp"); lp.I(".p2align 3"); lp.I("L_a_loop:")
    p1 = period(1, name="p1"); p2 = period(0, name="p2", loop_end="L_a_loop")
    fin = final()
    op, s2, s3 = outphase()
    tm = truemax()
    nf = Sec("nf"); nf.I("L_a_noffn:")
    g2 = gemm(False); tr = transposer(); tr.I("s_branch L_a_attn")
    resolve_waits([st, g1]); resolve_waits([st, g2, tr]); resolve_waits([fin, op])
    order = [st, g1, si, pre, p0, lp, p1, p2, fin, op, s2, s3, nf, g2, tr] + tm
    main = [si, pre, p0, p1, p2, p1, p2, fin, op]
    traces = [[st, g1] + main, [st, g2, tr] + main,
              [p2, upto(fin, "L_a_truemax"), tm[0], tm[1], tm[2], tm[2], tm[3], tm[1], tm[2], tm[3], tm[4], pre, p0],
              [p2, upto(fin, "scc1 L_s2"), s2], [fin, upto(op, "vccnz L_s3"), s3]]
    for x in (g1, g2, si, pre, p0, p1, p2, fin, op): print(f"  est {x.name}: cycles={est_cycles(x)}", file=sys.stderr)
    return order, traces, kdesc(KNAME, 512, 256, 102)

def main():
    ref = open(f"cdna_kernels/{NAME}.s.ref").read().split("\n")
    hdr = [l for l in ref if l.startswith(";") and "@launch" not in l and "Override launch" not in l and "grid=ceil" not in l]
    out = hdr[:]
    if OPT["lnfuse"]:
        out.append("; @launch grid=(256,1,1) block=(256,1,1) lds=163840")
        ks = [(KNAME, gen_main)]
    else:
        out.append("; @launch kernel=ln_kernel grid=(256,1,1) block=(128,1,1) lds=0")
        out.append("; @launch kernel=attn_kernel grid=(256,1,1) block=(256,1,1) lds=163840")
        ks = [("ln_kernel", gen_ln), (KNAME, gen_main)]
    out.append('.amdgcn_target "amdgcn-amd-amdhsa--gfx950"')
    out.append(".text")
    kds = []; nerr = 0
    for nm, fn in ks:
        secs, traces, kd = fn()
        out.append(f".globl {nm}\n.p2align 8\n.type {nm},@function")
        for sc in secs: out.append(sc.text())
        kds.append(kd)
        for n, tr in enumerate(traces):
            errs = check_trace(tr, f"{nm[-12:]}/{n}")
            for e in errs[:20]: print(e, file=sys.stderr)
            nerr += len(errs)
    out.append("L_code_end:")
    out.append('.section .rodata,"a"')
    out += kds
    open(sys.argv[1], "w").write("\n".join(out) + "\n")
    print(f"hazard problems: {nerr}", file=sys.stderr)
main()
```

```python
import sys, math, struct
from asmlib import *

NAME = "recurrent_scan__gqa_block_cached__glu_gated_swiglu__prompt"
OPT = dict(stamp=0, lnfuse=1, pfc=1, ldsc1=1, xsc1=1, laend=2, kvflag=0, wflag=0, lead=1, warm=1, wtouch=0, pbar=1, slp=1, fwarm=0, prel=1, fin56=1)
for x in sys.argv[2:]:
    k, val = x.split("="); assert k in OPT, k; OPT[k] = int(val)
KNAME = NAME + "_kernel" if OPT["lnfuse"] else "attn_kernel"

def f32(x): return "0x%08x" % struct.unpack("<I", struct.pack("<f", x))[0]

XN_OFF = 0x0000000
H_OFF  = 0x0300000
O_OFF  = 0x0A00000
WT_OFF = 0x1A00000
FL_OFF = 0x2200000
F1_OFF = 0x1000; F3_OFF = 0x20000; FL_SIZE = 0x40000
ST_OFF = 0x2400000
H_RT = 54 * 4096; O_RT = 128 * 4096; WT_CT = 182 * 5120
MF = "v_mfma_f32_16x16x32_bf16"
QS = math.log2(math.e) / math.sqrt(128.0)
SPIN = 1 << 18
FLG = {0: "", 1: " sc1", 2: " nt", 3: " sc0", 4: " sc0 sc1"}
LD = FLG[OPT["ldsc1"]]; XLD = FLG[OPT["xsc1"]]; KVF = FLG[OPT["kvflag"]]; WF = FLG[OPT["wflag"]]

def srd_l(d, base, off_lo=None, size=None, lit_off=0):
    L = []
    b = base
    if lit_off:
        L += [f"s_add_u32 {s(d)}, {s(base)}, {hex(lit_off)}", f"s_addc_u32 {s(d+1)}, {s(base+1)}, 0"]; b = d
    if off_lo is not None:
        L += [f"s_add_u32 {s(d)}, {s(b)}, {s(off_lo)}", f"s_addc_u32 {s(d+1)}, {s(b+1)}, 0"]
    elif not lit_off:
        L += [f"s_mov_b32 {s(d)}, {s(base)}", f"s_mov_b32 {s(d+1)}, {s(base+1)}"]
    L.append(f"s_mov_b32 {s(d+2)}, {hex(size)}" if isinstance(size, int) else size)
    L.append(f"s_mov_b32 {s(d+3)}, 0x20000")
    return L
def srd(sec, *a, **k):
    for x in srd_l(*a, **k): sec.I(x)

sK, sV, sWQ, sW1, sW3, sXN, sH, sO = 8, 12, 16, 20, 24, 28, 32, 36
sSRC, sWT = 20, 24
sHB, sW2, sWO, sOB, sX, sOUT = 16, 20, 24, 28, 32, 60
sW1024 = 40; sT = 41; sKOFF = 42; sCNT = 43; sHH = 44; sC4096 = 45
sRETRY = 48; sTW = 49; sU = 50; sC2 = 51; sGS = 52; sRTB = 53; sCT = 54; sT2 = 55
sA, sB, sNL2E, sSPIN = 56, 57, 58, 59
sF3 = 51; sPHI = 50; sN = 49; sWH = 66; sWW = 67
pK, pV, pWQ, pWO, pW1, pW3, pW2, pWS, pX, pOUT, pDBG = 68, 70, 72, 74, 76, 78, 80, 82, 94, 96, 98
sFL, sDBG, sTAG = 84, 88, 92
QF, P0, P1, SS, NEGM = 0, 64, 128, 192, 208
vKA, vVA, vDK, vDV = 224, 228, 236, 237
vLN16 = 238
vXOFF, vDQ, vDF, vAA = 239, 240, 241, 242
vB, vA = 239, 243
vPOLL = 245
vOOFF, vHOFF = 246, 247
vTMP = 248
vTD = 241
vTCH = 247; vTCD = 254
OA, LA, KF, VF, ONES = 0, 128, 144, 160, 176
XF = 64
RING = 98304
KBUF = [0, 32768]; VBASE = 65536; VBUF = [0, 32768]
FLAGS = 131072

def stamp(sec, idx):
    if not OPT["stamp"]: return
    sec.I(f"s_memtime s[64:65]")
    sec.I(f"s_waitcnt lgkmcnt(0)")
    sec.I(f"v_writelane_b32 v255, s64, {idx}")
    sec.I(f"s_memrealtime s[64:65]")
    sec.I(f"s_waitcnt lgkmcnt(0)")
    sec.I(f"v_writelane_b32 v255, s64, {idx+32}")

def code_prefetch(sc, sr, vt, who):
    I = sc.I
    I(f"s_getpc_b64 {s(sr,2)}")
    I(f"L_pc_{who}:")
    if who == "ln":
        I(f"s_add_u32 {s(sr)}, {s(sr)}, {KNAME}-L_pc_{who}")
        I(f"s_addc_u32 {s(sr+1)}, {s(sr+1)}, 0")
    else:
        I(f"s_sub_u32 {s(sr)}, {s(sr)}, L_pc_{who}-{KNAME}")
        I(f"s_subb_u32 {s(sr+1)}, {s(sr+1)}, 0")
    I(f"s_mov_b32 {s(sr+2)}, L_code_end-{KNAME}")
    I(f"s_mov_b32 {s(sr+3)}, 0x20000")
    I("s_lshr_b32 s3, s2, 3")
    I("s_lshl_b32 s3, s3, 12")
    I(f"v_and_b32 {v(vt)}, 7, v0")
    I(f"v_lshrrev_b32 {v(vt+1)}, 6, v0")
    I(f"v_lshl_add_u32 {v(vt)}, {v(vt+1)}, 3, {v(vt)}")
    I(f"v_lshlrev_b32 {v(vt)}, 7, {v(vt)}")
    I(f"buffer_load_dword {v(vt+1)}, {v(vt)}, {s(sr,4)}, s3 offen")

def ln_addr(sc, vl, vs, tmp):
    I = sc.I
    I(f"v_and_b32 {v(tmp)}, 3, v0")
    I(f"v_bfe_u32 {v(tmp+1)}, v0, 6, 1")
    I(f"v_lshl_add_u32 {v(tmp)}, {v(tmp+1)}, 2, {v(tmp)}")
    I(f"v_bfe_u32 {v(tmp+1)}, v0, 2, 4                   ; p")
    I(f"v_mul_u32_u24 {v(vl)}, 1280, {v(tmp)}")
    I(f"v_lshl_add_u32 {v(vl)}, {v(tmp+1)}, 4, {v(vl)}")
    I(f"v_lshlrev_b32 {v(vs)}, 7, {v(tmp+1)}")
    I(f"v_lshl_add_u32 {v(vs)}, {v(tmp)}, 4, {v(vs)}")
def ln_compute(sc, D, F, T, vs, sdst, sblk, tag, flags):
    I = sc.I
    I("s_mov_b32 s3, 0xffff0000")
    for i in range(5):
        I(f"s_waitcnt @vm:{tag}{i}")
        for r in range(4):
            d = 4*i + r
            I(f"v_lshlrev_b32 {v(F+2*d)}, 16, {v(D+d)}")
            I(f"v_and_b32 {v(F+1+2*d)}, s3, {v(D+d)}")
    def tree(op, first):
        for h in range(2): I(first(h))
        for d in range(2, 10):
            for h in range(2): I(op(h, d))
        I(f"v_pk_add_f32 {v(T,2)}, {v(T,2)}, {v(T+2,2)}")
        I(f"v_add_f32 {v(T)}, {v(T)}, {v(T+1)}")
        for sh in (4, 8):
            I("s_nop 1")
            I(f"v_add_f32_dpp {v(T)}, {v(T)}, {v(T)} row_ror:{sh} row_mask:0xf bank_mask:0xf")
        for swap in ("v_permlane16_swap_b32", "v_permlane32_swap_b32"):
            I(f"v_mov_b32 {v(T+1)}, {v(T)}")
            I("s_nop 1")
            I(f"{swap} {v(T)}, {v(T+1)}")
            I(f"v_add_f32 {v(T)}, {v(T)}, {v(T+1)}")
    e = lambda h, d: v(F + 20*h + 2*d, 2)
    tree(lambda h, d: f"v_pk_add_f32 {v(T+2*h,2)}, {v(T+2*h,2)}, {e(h,d)}", lambda h: f"v_pk_add_f32 {v(T+2*h,2)}, {e(h,0)}, {e(h,1)}")
    I(f"v_mul_f32 {v(T)}, {f32(-1.0/640)}, {v(T)}     ; -mean")
    I(f"v_mov_b32 {v(T+1)}, {v(T)}")
    for d in range(20): I(f"v_pk_add_f32 {v(F+2*d,2)}, {v(F+2*d,2)}, {v(T,2)}")
    tree(lambda h, d: f"v_pk_fma_f32 {v(T+2*h,2)}, {e(h,d)}, {e(h,d)}, {v(T+2*h,2)}",
         lambda h: f"v_pk_mul_f32 {v(T+2*h,2)}, {e(h,0)}, {e(h,0)}\nv_pk_fma_f32 {v(T+2*h,2)}, {e(h,1)}, {e(h,1)}, {v(T+2*h,2)}")
    I(f"v_mov_b32 {v(T+1)}, {f32(1e-5)}")
    I(f"v_fmac_f32 {v(T+1)}, {f32(1.0/640)}, {v(T)}")
    I(f"v_rsq_f32 {v(T)}, {v(T+1)}")
    I("s_nop 0")
    I(f"v_mul_f32 {v(T)}, {f32(QS)}, {v(T)}")
    I(f"v_mov_b32 {v(T+1)}, {v(T)}")
    for i in range(5):
        for r in range(4):
            d = 4*i + r
            I(f"v_pk_mul_f32 {v(F+2*d,2)}, {v(F+2*d,2)}, {v(T,2)}")
        for r in range(4):
            d = 4*i + r
            I(f"v_cvt_pk_bf16_f32 {v(D+d)}, {v(F+2*d)}, {v(F+2*d+1)}")
        if i % 2 == 0: I(f"s_add_u32 s3, {s(sblk)}, {2048*i}")
        I(f"buffer_store_dwordx4 {v(D+4*i,4)}, {v(vs)}, {s(sdst,4)}, s3 offen offset:{2048*(i%2)}{flags}", "LNS")

def gen_ln():
    sc = Sec("ln"); I = sc.I
    I("ln_kernel:")
    I("s_cmp_ge_u32 s2, 256")
    I("s_cbranch_scc1 L_ln_end")
    I("s_load_dwordx2 s[4:5], s[0:1], 0")
    I("s_load_dwordx2 s[6:7], s[0:1], 88")
    ln_addr(sc, 1, 2, 3)
    I("s_mul_i32 s16, s2, 10240")
    I("s_waitcnt lgkmcnt(0)")
    srd(sc, 8, 4, size=2048*1280)
    srd(sc, 12, 6, size=2048*1280, lit_off=XN_OFF)
    for i in range(5): I(f"buffer_load_dwordx4 {v(8+4*i,4)}, v1, s[8:11], s16 offen offset:{256*i}", f"LN{i}")
    if OPT["pfc"]: code_prefetch(sc, 20, 76, "ln")
    ln_compute(sc, 8, 32, 4, 2, 12, 16, "LN", "")
    I("L_ln_end:")
    I("s_endpgm")
    resolve_waits([sc])
    return [sc], [[sc]], kdesc("ln_kernel", 80, 80, 32)

LND, LNF, LNT, vLNL, vLNS = 128, 148, 188, 126, 127
def a_setup():
    sc = Sec("a_setup"); I = sc.I
    I(f"{KNAME}:")
    I("s_cmp_ge_u32 s2, 256")
    I("s_cbranch_scc1 L_a_end")
    I(f"s_load_dwordx2 {s(pX,2)}, s[0:1], 0")
    I(f"s_load_dwordx2 {s(pWS,2)}, s[0:1], 88")
    I(f"s_load_dwordx4 {s(pK,4)}, s[0:1], 8      ; K, V")
    I(f"s_load_dwordx4 {s(pWQ,4)}, s[0:1], 24")
    I(f"s_load_dwordx4 {s(pW1,4)}, s[0:1], 48     ; w1, w3")
    I(f"s_load_dwordx2 {s(pW2,2)}, s[0:1], 64     ; w2")
    I(f"s_load_dwordx4 {s(pOUT,4)}, s[0:1], 72")
    if OPT["pfc"] == 2: code_prefetch(sc, sOUT, vTMP + 5, "a")
    if OPT["stamp"]: I("v_mov_b32 v255, 0")
    I("v_lshrrev_b32 v1, 6, v0")
    I("v_and_b32 v2, 63, v0                   ; lane")
    I(f"v_readfirstlane_b32 s4, v1")
    I("s_and_b32 s5, s2, 7")
    I("s_lshl_b32 s5, s5, 2")
    I("s_bfe_u32 s6, s2, 0x20003")
    I("s_add_u32 s5, s5, s6                   ; head")
    I("s_lshr_b32 s6, s2, 5                   ; q tile")
    I(f"s_and_b32 {s(sHH)}, s2, 31")
    I(f"s_lshl_b32 {s(sW1024)}, s4, 10")
    if OPT["lnfuse"]: ln_addr(sc, vLNL, vLNS, 4)
    I(f"v_lshlrev_b32 v3, 4, v2                ; 16*lane")
    I("v_lshrrev_b32 v4, 3, v0                ; 8w + l>>3")
    I("v_bfe_u32 v5, v0, 4, 1")
    I("v_bfe_u32 v6, v0, 6, 1")
    I("v_lshl_add_u32 v5, v6, 1, v5")
    I("v_lshlrev_b32 v5, 1, v5")
    I("v_and_b32 v6, 7, v0")
    I("v_xor_b32 v5, v5, v6")
    I("v_lshlrev_b32 v5, 4, v5")
    I(f"v_lshl_add_u32 {v(vDQ)}, v4, 13, v5")
    I(f"v_mul_u32_u24 {v(vDF)}, 3456, v4")
    I(f"v_add_u32 {v(vDF)}, {v(vDF)}, v5")
    I(f"v_mul_u32_u24 {v(vXOFF)}, 81920, v1")
    I("v_bfe_u32 v4, v2, 3, 1")
    I("v_mul_u32_u24 v4, 10240, v4")
    I("v_lshrrev_b32 v5, 4, v2")
    I("v_lshl_add_u32 v4, v5, 7, v4")
    I("v_lshl_add_u32 v4, v6, 4, v4")
    I(f"v_add_u32 {v(vXOFF)}, {v(vXOFF)}, v4")
    I("s_waitcnt lgkmcnt(0)")
    stamp(sc, 0)
    if OPT["lnfuse"]:
        I("s_mul_i32 s7, s2, 10240")
        srd(sc, sX, pX, off_lo=7, size=10240)
        I("s_cmp_lt_u32 s4, 2")
        I("s_cbranch_scc0 L_x_skip")
        for i in range(5): I(f"buffer_load_dwordx4 {v(LND+4*i,4)}, {v(vLNL)}, {s(sX,4)}, 0 offen offset:{256*i}", f"LN{i}")
        I("L_x_skip:")
    I("s_lshl_b32 s7, s6, 7")
    I(f"s_add_u32 s7, s7, {hex(FL_OFF)}")
    I(f"s_load_dwordx2 {s(sTAG,2)}, {s(pWS,2)}, s7")
    I("s_mul_i32 s7, s6, 4*81920")
    srd(sc, sXN, pWS, off_lo=7, size=4*81920, lit_off=XN_OFF)
    I("s_lshl_b32 s7, s5, 8")
    srd(sc, sWQ, pWQ, off_lo=7, size=f"s_sub_u32 {s(sWQ+2)}, {640*8192}, s7")
    I(f"s_min_u32 s7, {s(sHH)}, 26")
    I(f"s_lshl_b32 s7, s7, 7")
    srd(sc, sW1, pW1, off_lo=7, size=f"s_sub_u32 {s(sW1+2)}, {640*3456}, s7")
    srd(sc, sW3, pW3, off_lo=7, size=f"s_sub_u32 {s(sW3+2)}, {640*3456}, s7")
    I(f"s_mov_b32 {s(sU)}, {32*3456}")
    I(f"s_cmp_lt_u32 {s(sHH)}, 27")
    I("s_cbranch_scc1 L_isffn")
    srd(sc, sW1, sWQ, size=f"s_sub_u32 {s(sW1+2)}, {s(sWQ+2)}, {128*8192}", lit_off=128*8192)
    srd(sc, sW3, sWQ, size=f"s_sub_u32 {s(sW3+2)}, {s(sWQ+2)}, {128*8192+128}", lit_off=128*8192+128)
    I(f"s_mov_b32 {s(sU)}, {32*8192}")
    I(f"v_mov_b32 {v(vDF)}, {v(vDQ)}")
    I("L_isffn:")
    ln_produce(sc)
    for t in range(4):
        for m in range(4):
            I(f"s_add_u32 m0, {s(sW1024)}, {RING + 16384*t + 4096*m}")
            I(f"s_mov_b32 {s(sT)}, {32*m*8192 + 128*t}" if t < 2 else f"s_mul_i32 {s(sT)}, {s(sU)}, {m}")
            I(f"buffer_load_dwordx4 {v(vDQ if t < 2 else vDF)}, {s([sWQ, sWQ, sW1, sW3][t],4)}, {s(sT)} offen{WF} lds", f"W{t}")
    a_setup2(sc)
    ln_publish(sc)
    ln_wait(sc, "")
    stamp(sc, 7)
    for j in range(4):
        I(f"s_mov_b32 {s(sT2)}, {20480*j}")
        for ks in range(4): I(f"buffer_load_dwordx4 {a(XF + 16*j + 4*ks, 4)}, {v(vXOFF)}, {s(sXN,4)}, {s(sT2)} offen offset:{512*ks}{XLD}", f"X0_{j}")
    if OPT["pfc"] == 1: code_prefetch(sc, sOUT, vTMP + 5, "a")
    I("s_barrier")
    for ks in range(4):
        for hf in range(2): I(f"ds_read_b64_tr_b16 {v(SS + 4*ks + 2*hf, 2)}, {v(vAA)} offset:{4096*ks + 512*hf}")
    return sc

def a_setup2(sc):
    I = sc.I
    I(f"s_mov_b32 {s(sC4096)}, 4096")
    I(f"s_mov_b32 {s(sC4096+1)}, 8192")
    I(f"s_mov_b32 {s(sC4096+2)}, 12288")
    I("s_lshl_b32 s7, s5, 19")
    srd(sc, sK, pK, off_lo=7, size=524288)
    srd(sc, sV, pV, off_lo=7, size=524288)
    I(f"s_mul_i32 s7, s6, {4*H_RT}")
    I(f"s_min_u32 s3, {s(sHH)}, 26")
    I(f"s_lshl_b32 s3, s3, 13")
    I("s_add_u32 s7, s7, s3")
    srd(sc, sH, pWS, off_lo=7, size=3*H_RT + 8192, lit_off=H_OFF)
    I(f"s_lshl_b32 s7, s6, 21                  ; qt*4*O_RT")
    I("s_lshl_b32 s3, s5, 14")
    I("s_add_u32 s7, s7, s3")
    srd(sc, sO, pWS, off_lo=7, size=3*O_RT + 16384, lit_off=O_OFF)
    srd(sc, sDBG, pDBG, size=256)
    I(f"s_mul_i32 {s(sTW)}, s6, 5")
    I(f"s_add_u32 {s(sTW)}, {s(sTW)}, {s(sHH)}")
    I(f"s_sub_u32 {s(sTW)}, {s(sTW)}, 27")
    I(f"s_mov_b32 {s(sRETRY)}, 0")
    I(f"s_mov_b32 {s(sC2)}, {f32(QS*QS)}")
    I(f"s_mov_b32 {s(sGS)}, {f32(-math.sqrt(128.0))}")
    I(f"s_mov_b32 {s(sNL2E)}, {f32(-math.log2(math.e))}")
    I(f"s_bfe_u32 {s(sRTB)}, s2, 0x20001")
    I("s_lshl_b32 s7, s6, 2")
    I(f"s_add_u32 {s(sRTB)}, {s(sRTB)}, s7")
    I(f"s_and_b32 {s(sCT)}, s2, 1")
    I(f"s_lshl_b32 {s(sCT)}, {s(sCT)}, 2")
    I("s_bfe_u32 s7, s2, 0x20003")
    I(f"s_add_u32 {s(sCT)}, {s(sCT)}, s7")
    I(f"v_mul_u32_u24 {v(vHOFF)}, {H_RT}, v1")
    I(f"v_add_u32 {v(vHOFF)}, {v(vHOFF)}, v3")
    I(f"v_lshl_add_u32 {v(vOOFF)}, v1, 19, v3")
    I("v_lshrrev_b32 v4, 4, v2                ; g")
    I("v_bfe_u32 v5, v2, 2, 2                 ; r'")
    I("v_and_b32 v6, 3, v2                    ; c")
    I("v_and_b32 v7, 15, v2                   ; q / kv")
    I("v_lshl_add_u32 v8, v4, 3, v5")
    I("v_lshlrev_b32 v8, 7, v8")
    I("v_lshl_add_u32 v8, v6, 3, v8")
    I(f"v_add_u32 v8, {RING}, v8")
    I("v_bfe_u32 v9, v2, 3, 2")
    for nb in range(4):
        I(f"v_xor_b32 v10, {nb}, v9")
        I(f"v_lshl_add_u32 {v(vAA+nb)}, v10, 5, v8")
    I("v_bfe_u32 v9, v2, 4, 1")
    I("v_bfe_u32 v10, v2, 5, 1")
    I("v_lshl_add_u32 v9, v9, 1, v10          ; pg")
    I("v_xor_b32 v9, v9, v7")
    I("v_lshlrev_b32 v8, 8, v7")
    for t in range(4):
        I(f"v_xor_b32 v10, {4*t}, v9")
        I(f"v_lshl_add_u32 {v(vKA+t)}, v10, 4, v8")
    I("v_lshrrev_b32 v9, 2, v2                ; 4g+r'")
    I("v_lshlrev_b32 v8, 8, v9")
    I("v_lshl_add_u32 v8, v6, 3, v8")
    I(f"v_add_u32 v8, {VBASE}, v8")
    I("v_and_b32 v9, 7, v9")
    for e in range(8):
        I(f"v_xor_b32 v10, {e}, v9")
        I(f"v_lshl_add_u32 {v(vVA+e)}, v10, 5, v8")
    I("v_lshrrev_b32 v9, 4, v0                ; 4w + l>>4")
    I("v_lshlrev_b32 v8, 8, v9")
    I("v_xor_b32 v10, v7, v9")
    I(f"v_lshl_add_u32 {v(vDK)}, v10, 4, v8")
    I("v_and_b32 v10, 7, v9")
    I("v_lshlrev_b32 v10, 1, v10")
    I("v_xor_b32 v10, v7, v10")
    I(f"v_lshl_add_u32 {v(vDV)}, v10, 4, v8")
    I(f"v_mov_b32 {v(vLN16)}, v3")
    I("s_waitcnt lgkmcnt(0)")
    I(f"s_add_u32 {s(sTAG)}, {s(sTAG)}, 0x9e3779b9")
    I(f"s_add_u32 {s(sTAG+1)}, {s(sTAG+1)}, 0x7f4a7c15")

def line_off(dst, ln16=None):
    ln16 = v(vLN16) if ln16 is None else ln16
    return [f"v_and_b32 {v(dst)}, 0x380, {ln16}", f"v_lshl_add_u32 {v(dst)}, {v(dst)}, 17, {ln16}"]
def lane0_off(dst):
    return f"v_lshlrev_b32 {v(dst)}, 20, {v(vLN16)}"

def spin(sc, lab, load, check, back=None):
    I = sc.I
    I(f"s_mov_b32 {s(sSPIN)}, {SPIN}")
    I(f"{lab}:")
    I(load)
    I("s_waitcnt vmcnt(0)")
    for x in check(f"{lab}_ok"): I(x)
    I(f"s_sleep {OPT['slp']}")
    I(f"s_sub_u32 {s(sSPIN)}, {s(sSPIN)}, 1")
    I(f"s_cmp_lg_u32 {s(sSPIN)}, 0")
    I(f"s_cbranch_scc1 {lab}")
    I(f"{lab}_ok:")
    if back: I(f"s_branch {back}")

def ln_produce(sc):
    I = sc.I
    I("s_lshl_b32 s7, s2, 1")
    I("s_add_u32 s7, s7, s4")
    I("s_lshl_b32 s7, s7, 7")
    I(f"s_add_u32 s7, s7, {F1_OFF}")
    I("s_lshr_b32 s3, s4, 1")
    I("s_lshl_b32 s3, s3, 20")
    I(f"s_add_u32 {s(sA)}, s7, s3")
    srd(sc, sFL, pWS, size=FL_SIZE, lit_off=FL_OFF)
    for x in line_off(125, "v3"): I(x)
    I("s_cmp_lt_u32 s4, 2")
    I(f"s_cbranch_scc0 L_ln_skip")
    if OPT["fwarm"]:
        I("s_waitcnt lgkmcnt(0)")
        for r in range(4): I(f"v_mov_b32 {v(120+r)}, {s(sTAG + r%2)}")
        I(f"buffer_store_dwordx4 {v(120,4)}, v125, {s(sFL,4)}, {s(sA)} offen sc1")
    I(f"s_mul_i32 s7, {s(sHH)}, 10240")
    if OPT["stamp"]:
        stamp(sc, 23); I("s_waitcnt @vm:LN4"); stamp(sc, 24)
    ln_compute(sc, LND, LNF, LNT, vLNS, sXN, 7, "LN", " sc1")
    stamp(sc, 25)
    I(f"L_ln_skip:")
def ln_publish(sc):
    I = sc.I
    for r in range(4): I(f"v_mov_b32 {v(120+r)}, {s(sTAG + r%2)}")
    I("s_waitcnt @vm:LNS")
    stamp(sc, 26)
    I(f"buffer_store_dwordx4 {v(120,4)}, v125, {s(sFL,4)}, {s(sA)} offen sc1")
def ln_wait(sc, sfx):
    I = sc.I
    I("s_lshl_b32 s7, s6, 2")
    I("s_add_u32 s7, s7, s4")
    I("s_lshl_b32 s7, s7, 11")
    I(f"s_add_u32 s7, s7, {F1_OFF}")
    I(f"v_and_b32 {v(vTMP+1)}, 0xf0, {v(vLN16)}")
    I(f"v_lshlrev_b32 {v(vTMP+1)}, 3, {v(vTMP+1)}")
    if OPT["pbar"]: I("s_barrier")
    stamp(sc, 27)
    spin(sc, f"L_s1{sfx}", f"buffer_load_dwordx2 {v(vTMP+4,2)}, {v(vTMP+1)}, {s(sFL,4)}, s7 offen sc1",
         lambda ok: [f"v_cmp_ne_u64 vcc, {s(sTAG,2)}, {v(vTMP+4,2)}", f"s_cbranch_vccz {ok}"])

def kv_dma(which, buf, m, soff_text):
    base = (KBUF[buf] if which == "K" else VBASE + VBUF[buf]) + 4096*m
    return (f"s_add_u32 m0, {s(sW1024)}, {base}", soff_text,
            f"buffer_load_dwordx4 {v(vDK if which=='K' else vDV)}, {s(sK if which=='K' else sV,4)}, {s(sT)} offen{KVF} lds")

def gemm(ffn):
    sc = Sec("gemm_ffn" if ffn else "gemm_q"); I = sc.I
    if ffn:
        steps = [(0,"Q0"),(0,"Q1"),(0,"G"),(0,"U"),(1,"G"),(1,"U"),(1,"Q0"),(1,"Q1"),
                 (2,"G"),(3,"G"),(2,"U"),(4,"G"),(3,"U"),(4,"U"),(2,"Q0"),(3,"Q0"),(4,"Q0"),(2,"Q1"),(3,"Q1"),(4,"Q1")]
        xl = {0: [(1,0,6)], 1: [(1,6,6)], 2: [(1,12,4),(2,0,2)], 3: [(2,2,6)], 4: [(2,8,6)], 5: [(2,14,2),(3,0,4)],
              6: [(3,4,6)], 7: [(3,10,6)], 8: [(4,0,8)], 9: [(4,8,8)]}
        kvsteps = list(range(11, 19))
    else:
        steps = [(c, u) for c in range(5) for u in ("Q0", "Q1")]
        xl = {0: [(1,0,12)], 1: [(1,12,4),(2,0,6)], 2: [(2,6,10)], 3: [(3,0,10)], 4: [(3,10,6),(4,0,4)], 5: [(4,4,12)]}
        kvsteps = []
    NS = len(steps)
    first_use = {}
    for t, (c, u) in enumerate(steps): first_use.setdefault(c, t)
    def accn(u, nb, j): return {"G": QF, "U": P0, "Q1": P1, "Q0": 0}[u] + 16*nb + 4*j
    def acc(u, nb, j): return (a if u == "Q0" else v)(accn(u, nb, j), 4)
    def wdma(t, m):
        c, u = steps[t]
        if u[0] == "Q": so = (128*c + 32*m)*8192 + (128 if u == "Q1" else 0); sr = sWQ; vo = vDQ
        else: so = (128*c + 32*m)*3456; sr = sW1 if u == "G" else sW3; vo = vDF
        return (f"s_add_u32 m0, {s(sW1024)}, {RING + 16384*(t%4) + 4096*m}", f"s_mov_b32 {s(sT)}, {so}",
                f"buffer_load_dwordx4 {v(vo)}, {s(sr,4)}, {s(sT)} offen{WF} lds", f"W{t}")
    def xreg(c, j, ks): return a(XF + 64*(c%3) + 16*j + 4*ks, 4)
    def xld(c, j, ks): return f"buffer_load_dwordx4 {xreg(c, j, ks)}, {v(vXOFF)}, {s(sXN,4)}, {s(sT2)} offen offset:{512*ks}{XLD}"
    def xso(c, j): return f"s_mov_b32 {s(sT2)}, {2048*c + 20480*j}"
    def aread(t, nb, ks, hf, buf):
        return f"ds_read_b64_tr_b16 {v(SS + 16*buf + 4*ks + 2*hf, 2)}, {v(vAA+nb)} offset:{16384*(t%4) + 4096*ks + 512*hf}"
    if not ffn: tr_setup(sc)
    I("s_waitcnt @vm:X0_0 lgkmcnt(0)")
    stamp(sc, 1)
    g = Gaps()
    kvq = [("K", 0, m, 0) for m in range(8)] + [("K", 1, m, 32768) for m in range(8)] + [("V", 0, m, 0) for m in range(8)]
    blk = 0; seen = set()
    for t, (c, u) in enumerate(steps):
        extra = []
        for (xc, i0, cnt) in xl.get(t, []):
            for i in range(i0, i0 + cnt):
                j, ks = divmod(i, 4)
                extra.append(((xso(xc, j),) if (ks == 0 or i == i0) else (), xld(xc, j, ks), f"X{xc}"))
        if not ffn and t in (6, 7):
            for d in tr_dma(t - 6, 40960*(t - 6)): extra.append(((d[0], d[1]), d[2], f"T{t-6}"))
        if t in kvsteps:
            i0 = 3*kvsteps.index(t)
            for (wh, bf, m, so) in kvq[i0:i0+3]:
                d = kv_dma(wh, bf, m, f"s_mov_b32 {s(sT)}, {so + 4096*m}")
                extra.append(((d[0], d[1]), d[2], "K0" if (wh == "K" and bf == 0) else "KV1"))
        for nb in range(4):
            buf = blk % 2
            k0 = len(g.m)
            for j in range(4):
                for ks in range(4):
                    d = acc(u, nb, j)
                    cc = "0" if (u not in seen and ks == 0) else d
                    g.add(f"{MF} {d}, {v(SS + 16*buf + 4*ks, 4)}, {xreg(c, j, ks)}, {cc}")
            if blk == 0:
                for j in (1, 2, 3): g.S(k0 + 4*j - 1, f"s_waitcnt @vm:X0_{j}")
            last = (t == NS-1 and nb == 3)
            if not last:
                nt, nnb = (t, nb+1) if nb < 3 else (t+1, 0)
                if nb == 3:
                    g.S(k0, f"s_waitcnt @vm:W{t+1}")
                    g.S(k0, "s_barrier")
                n = 0
                for ks in range(4):
                    for hf in range(2):
                        g.M(k0 + 1 + 2*(n//2), aread(nt, nnb, ks, hf, 1-buf), f"A{blk+1}"); n += 1
                w = "s_waitcnt lgkmcnt(0)"
                if nb == 3 and first_use[steps[t+1][0]] == t+1: w += f" @vm:X{steps[t+1][0]}"
                g.S(k0 + 15, w)
            elif ffn:
                g.S(k0, "s_waitcnt @vm:K0")
                g.S(k0, "s_barrier")
            if nb == 3 and t + 4 < NS:
                for m in range(4):
                    x = wdma(t+4, m); kk = k0 + [2, 6, 10, 13][m]
                    g.S(kk-1, x[0]); g.S(kk, x[1]); g.M(kk, x[2], x[3])
            if nb < 3:
                mine = extra[(len(extra)*nb + 2)//3:(len(extra)*(nb+1) + 2)//3]
                slots = {0: [], 1: [10], 2: [10, 14], 3: [9, 12, 14], 4: [2, 6, 10, 14]}[len(mine)]
                if blk == 0: slots = [12, 13, 14, 15][:len(mine)]
                if not ffn and nb == 0 and t in (6, 7):
                    for x in tr_src(t - 6): g.S(k0, x)
                for n, (pre, ld, tg) in enumerate(mine):
                    kk = k0 + slots[n]
                    if len(pre) == 2: g.S(kk-1, pre[0]); g.S(kk, pre[1])
                    elif len(pre) == 1: g.S(kk, pre[0])
                    g.M(kk, ld, tg)
            blk += 1
        seen.add(u)
    T = vTMP
    def qconv(grp, sp):
        ops = []; st = 2*grp + sp
        for j in range(4):
            D = QF + 16*j + 4*st
            for hb in range(2):
                A0 = accn(f"Q{grp}", 2*sp + hb, j)
                if grp == 0:
                    for r in range(4): ops.append(f"v_accvgpr_read_b32 {v(T+r)}, {a(A0+r)}")
                    A0 = T
                ops.append(f"v_cvt_pk_bf16_f32 {v(D+2*hb)}, {v(A0)}, {v(A0+1)}")
                ops.append(f"v_cvt_pk_bf16_f32 {v(D+2*hb+1)}, {v(A0+2)}, {v(A0+3)}")
        for j in range(4):
            D = QF + 16*j + 4*st
            ops.append(f"v_permlane16_swap_b32 {v(D)}, {v(D+2)}")
            ops.append(f"v_permlane16_swap_b32 {v(D+1)}, {v(D+3)}")
        return ops
    def gate_ops():
        ops = []
        for b in range(QF, QF + 64, 4):
            for e in range(4): ops.append(f"v_mul_f32 {v(T+e)}, {s(sGS)}, {v(b+e)}")
            for e in range(4): ops.append(f"v_exp_f32 {v(T+e)}, {v(T+e)}")
            for e in range(4): ops.append(f"v_fma_f32 {v(T+e)}, {v(T+e)}, {s(sC2)}, {s(sC2)}")
            for e in range(4): ops.append(f"v_rcp_f32 {v(T+e)}, {v(T+e)}")
            for e in range(4): ops.append(f"v_mul_f32 {v(b+e)}, {v(b+e)}, {v(T+e)}")
        return ops
    def h_ops():
        ops = []
        for fs in range(2):
            for j in range(4):
                src = [16*(2*fs + hb) + 4*j + r for hb in range(2) for r in range(4)]
                for e in range(8): ops.append(f"v_mul_f32 {v(QF+src[e])}, {v(QF+src[e])}, {v(P0+src[e])}")
                D = P0 + src[0]
                for e in range(4): ops.append(f"v_cvt_pk_bf16_f32 {v(D+e)}, {v(QF+src[2*e])}, {v(QF+src[2*e+1])}")
                so = "0" if fs == 0 else s(sC4096)
                ops.append(f"buffer_store_dwordx4 {v(D,4)}, {v(vHOFF)}, {s(sH,4)}, {so} offen offset:{1024*j} sc1")
        return ops
    n = len(g.m)
    if ffn:
        k = g.fill(gate_ops(), 64*12 + 4)
        print("   gate ops end at gap", k, "of", n, file=sys.stderr)
        k = g.fill(h_ops(), max(k, 64*14 + 4), force_by=n - 64)
        print("   h ops end at gap", k, file=sys.stderr)
        rest = qconv(0, 0) + qconv(0, 1)
        k = g.fill(rest, max(k, 64*17 + 4), force_by=n - 14)
        k = g.fill(qconv(1, 0), max(k, n - 32 + 4), force_by=n)
    else:
        k = g.fill(qconv(0, 0) + qconv(0, 1), n - 64 + 4, force_by=n - 14)
        k = g.fill(qconv(1, 0), max(k, n - 32 + 4), force_by=n)
    g.emit(sc)
    if ffn:
        for t in range(4): I(kread(KF, 0, 0, t))
        I("s_nop 1")
    else: I("s_nop 5")
    for o in qconv(1, 1): I(o)
    stamp(sc, 2)
    return sc

def tr_setup(sc):
    I = sc.I
    srd(sc, sWT, pWS, size=8*WT_CT, lit_off=WT_OFF)
    I(f"s_mov_b32 s67, {4096*1280}")
    I(f"s_mov_b32 {s(sSRC+3)}, 0x20000")
    I(f"v_lshrrev_b32 v9, 8, {v(vDV)}")
    I(f"v_and_b32 v10, 0xff, {v(vDV)}")
    I(f"v_mul_u32_u24 {v(vTD)}, 1280, v9")
    I(f"v_add_u32 {v(vTD)}, {v(vTD)}, v10")
def tr_src(r):
    return [f"s_add_u32 {s(sU)}, {s(sTW)}, {40*r}",
            f"s_cmp_lt_u32 {s(sU)}, 54",
            f"s_cselect_b32 {s(sSRC)}, {s(pW2)}, {s(pWO)}",
            f"s_cselect_b32 {s(sSRC+1)}, {s(pW2+1)}, {s(pWO+1)}",
            f"s_cselect_b32 {s(sSRC+2)}, {1728*1280}, s67",
            f"s_cselect_b32 s66, 0, 54",
            f"s_sub_u32 s66, {s(sU)}, s66",
            f"s_mul_i32 s66, s66, 40960"]
def tr_dma(r, lds):
    return [(f"s_add_u32 m0, {s(sW1024)}, {lds + 8192*sg + 4096*hi}", f"s_add_u32 {s(sT)}, s66, {256*sg + 20480*hi}",
             f"buffer_load_dwordx4 {v(vTD)}, {s(sSRC,4)}, {s(sT)} offen lds") for sg in range(5) for hi in range(2)]

def transposer():
    sc = Sec("transp"); I = sc.I
    T = P0
    def issue(r, lds):
        for x in tr_src(r): I(x)
        for d in tr_dma(r, lds):
            I(d[0]); I(d[1]); I(d[2], f"T{r}")
    I("s_waitcnt @vm:T1")
    I("s_barrier")
    issue(2, 81920); issue(3, 122880)
    I(f"v_subrev_u32 {v(T)}, {VBASE}, {v(vVA)}")
    I("s_mul_i32 s3, s4, 10")
    for i in range(10):
        I(f"s_add_u32 s7, s3, {i}")
        I(f"s_and_b32 {s(sT)}, s7, 7")
        I(f"s_lshl_b32 {s(sT)}, {s(sT)}, 5")
        I(f"s_lshr_b32 s7, s7, 3")
        I(f"s_lshl_b32 s7, s7, 13")
        I(f"s_or_b32 s7, s7, {s(sT)}")
        I(f"v_xor_b32 {v(T+6+i)}, s7, {v(T)}")
    I(f"s_mul_i32 s7, s4, {2*WT_CT}")
    I(f"v_add_u32 {v(T+2)}, s7, {v(vLN16)}")
    I(f"v_add_u32 {v(T+3)}, {WT_CT}, {v(T+2)}")
    I(f"v_add_u32 {v(T+4)}, 4096, {v(T+2)}")
    I(f"v_add_u32 {v(T+5)}, 4096, {v(T+3)}")
    cur = [0]
    def proc(r, lds):
        I(f"s_add_u32 {s(sU)}, {s(sTW)}, {40*r}")
        I(f"s_mul_i32 {s(sT2)}, {s(sU)}, 5120")
        if r == 4:
            I(f"s_cmp_ge_u32 {s(sU)}, 182")
            I(f"s_cbranch_scc1 L_tr_done")
        base = lds if lds <= 40960 else lds - 81920
        want = lds - base
        if want != cur[0]:
            for i in range(10): I(f"v_add_u32 {v(T+6+i)}, {want - cur[0]}, {v(T+6+i)}")
            cur[0] = want
        D = T + 16 + 40*(r % 2)
        for half in range(2):
            for nbi in range(5):
                for hf in range(2):
                    I(f"ds_read_b64_tr_b16 {v(D + 20*half + 4*nbi + 2*hf, 2)}, {v(T+6+5*half+nbi)} offset:{base + 4096*hf}")
            I("s_waitcnt lgkmcnt(0)")
            for nbi in range(5):
                vo = v(T+2+half) if nbi < 4 else v(T+4+half)
                I(f"buffer_store_dwordx4 {v(D + 20*half + 4*nbi, 4)}, {vo}, {s(sWT,4)}, {s(sT2)} offen offset:{1024*(nbi%4)} sc1")
    proc(0, 0); proc(1, 40960)
    I("s_barrier")
    issue(4, 40960)
    for m in range(8):
        d = kv_dma("K", 0, m, f"s_mov_b32 {s(sT)}, {4096*m}")
        I(d[0]); I(d[1]); I(d[2], "K0")
    I("s_waitcnt @vm:T3")
    I("s_barrier")
    proc(2, 81920); proc(3, 122880)
    I("s_waitcnt @vm:K0")
    I("s_barrier")
    proc(4, 40960)
    I("L_tr_done:")
    I("s_barrier")
    for m in range(8):
        for x in kv_dma("K", 1, m, f"s_mov_b32 {s(sT)}, {32768 + 4096*m}"): I(x)
    for m in range(8):
        for x in kv_dma("V", 0, m, f"s_mov_b32 {s(sT)}, {4096*m}"): I(x)
    for t in range(4): I(kread(KF, 0, 0, t))
    return sc

def kread(dst, buf, blk, t): return f"ds_read_b128 {a(dst + 4*t, 4)}, {v(vKA+t)} offset:{KBUF[buf] + 4096*blk}"
def vread(dst, buf, e, p, u): return f"ds_read_b64_tr_b16 {a(dst + 4*p + 2*u, 2)}, {v(vVA+e)} offset:{VBUF[buf] + 8192*p + 4096*u}"
def preg(P, p, j): return P + 16*j + 4*p
def pcvt(P, blk, j, hf):
    return f"v_cvt_pk_bf16_f32 {v(preg(P, blk//2, j) + 2*(blk%2) + hf)}, {v(SS + 4*j + 2*hf)}, {v(SS + 4*j + 2*hf + 1)}"
def sexp(j, r): return f"v_exp_f32 {v(SS + 4*j + r)}, {v(SS + 4*j + r)}"
def qk_group(g, kf, czero=False):
    k0 = len(g.m)
    for j in range(4):
        for t in range(4):
            c = ("0" if czero else v(NEGM + 4*j, 4)) if t == 0 else v(SS + 4*j, 4)
            g.add(f"{MF} {v(SS + 4*j, 4)}, {a(kf + 4*t, 4)}, {v(QF + 16*j + 4*t, 4)}, {c}")
    return k0
def pv_group(g, e, vf, P, first):
    k0 = len(g.m)
    for j in range(4):
        for p in range(4):
            d = a(OA + 16*e + 4*j, 4)
            g.add(f"{MF} {d}, {a(vf + 4*p, 4)}, {v(preg(P, p, j), 4)}, {'0' if (first and p == 0) else d}")
    return k0
def sum_group(g, P, first):
    k0 = len(g.m)
    for j in range(4):
        for p in range(4):
            d = a(LA + 4*j, 4)
            g.add(f"{MF} {d}, {a(ONES, 4)}, {v(preg(P, p, j), 4)}, {'0' if (first and p == 0) else d}")
    return k0
def soft4(g, k, P, blk, j):
    for r in range(4): g.V(k + 2*r, sexp(j, r))
    g.V(k + 3, pcvt(P, blk, j, 0)); g.V(k + 7, pcvt(P, blk, j, 1))

def rowmax_finish(sc, src):
    I = sc.I
    T = vTMP
    for swap in ("v_permlane16_swap_b32", "v_permlane32_swap_b32"):
        for j in range(4): I(f"v_mov_b32 {v(T+j)}, {v(src+j)}")
        I("s_nop 0")
        for j in range(4): I(f"{swap} {v(src+j)}, {v(T+j)}")
        for j in range(4): I(f"v_max_f32 {v(src+j)}, {v(src+j)}, {v(T+j)}")
    for j in range(4):
        for r in range(4): I(f"v_sub_f32 {v(NEGM + 4*j + r)}, 0, {v(src+j)}")

def standin():
    sc = Sec("standin"); I = sc.I
    I("L_a_attn:")
    I(f"v_mov_b32 {v(vTMP)}, 0x3f803f80")
    I("s_waitcnt lgkmcnt(0)")
    g = Gaps(); qk_group(g, KF, czero=True)
    ops = [f"v_accvgpr_write_b32 {a(ONES+r)}, {v(vTMP)}" for r in range(4)]
    for jj in range(4):
        g.S(2*jj, f"s_add_u32 s3, s4, {jj}"); g.S(2*jj, "s_and_b32 s3, s3, 3"); g.S(2*jj, "s_lshl_b32 s3, s3, 10")
        g.S(2*jj+1, "s_lshl_b32 s7, s4, 12"); g.S(2*jj+1, "s_add_u32 s3, s3, s7")
        g.V(2*jj+1, f"v_add_u32 {v(vB+jj)}, s3, {v(vLN16)}")
    g.S(8, "s_mul_i32 s3, s4, 5120")
    g.V(8, f"v_add_u32 {v(vA)}, s3, {v(vLN16)}")
    g.V(8, f"v_add_u32 {v(vA+1)}, 4096, {v(vA)}")
    for r in range(4): g.V(9 + r//2, ops[r])
    for j in range(2):
        g.V(12 + 2*j, f"v_max3_f32 {v(P1+j)}, {v(SS+4*j)}, {v(SS+4*j+1)}, {v(SS+4*j+2)}")
        g.V(12 + 2*j, f"v_max_f32 {v(P1+j)}, {v(P1+j)}, {v(SS+4*j+3)}")
    g.emit(sc)
    I("s_nop 1")
    for j in (2, 3):
        if j == 3: I("s_nop 3")
        I(f"v_max3_f32 {v(P1+j)}, {v(SS+4*j)}, {v(SS+4*j+1)}, {v(SS+4*j+2)}")
        I(f"v_max_f32 {v(P1+j)}, {v(P1+j)}, {v(SS+4*j+3)}")
    rowmax_finish(sc, P1)
    return sc

XLDS = 151552
def xo_ops(vo, T):
    ops = []
    for m in range(3):
        ops += [f"v_lshrrev_b32 {v(T)}, 4, {v(vLN16)}", f"v_add_u32 {v(T)}, {64*m}, {v(T)}",
                f"v_mul_u32_u24 {v(T+1)}, 6554, {v(T)}", f"v_lshrrev_b32 {v(T+1)}, 16, {v(T+1)}",
                f"v_mul_u32_u24 {v(T+1)}, 1120, {v(T+1)}", f"v_lshl_add_u32 {v(T+1)}, {v(T)}, 4, {v(T+1)}",
                f"v_add_u32 {v(vo+m)}, s7, {v(T+1)}"]
    ops += [f"v_and_b32 {v(T)}, 0x200, {v(vLN16)}", f"v_lshl_add_u32 {v(vo+2)}, {v(T)}, 20, {v(vo+2)}"]
    return ops

def prephase():
    sc = Sec("pre"); I = sc.I
    I("L_a_pre:")
    I(f"s_mov_b32 {s(sKOFF)}, 32768")
    I(f"s_mov_b32 {s(sCNT)}, 7")
    g = Gaps()
    for blk in range(8):
        kf = KF if blk % 2 == 0 else VF
        k0 = qk_group(g, kf)
        if blk < 7:
            for t in range(4): g.M(k0 + 3 + (t//2)*4, kread(VF if blk % 2 == 0 else KF, 0, blk+1, t))
            g.S(k0 + 15, "s_waitcnt lgkmcnt(0)")
        else:
            g.S(k0, "s_waitcnt vmcnt(0)")
            g.S(k0, "s_barrier")
            g.M(k0 + 3, f"buffer_atomic_add {v(vTMP+1)}, {v(vTMP)}, {s(sDBG,4)}, s3 offen sc1")
    g.V(0, lane0_off(vTMP)); g.V(1, f"v_mov_b32 {v(vTMP+1)}, 1")
    g.S(0, f"s_or_b32 s3, s4, {s(sRETRY)}"); g.S(1, "s_lshl_b32 s3, s3, 12")
    L = [f"s_mul_i32 s7, {s(sRTB)}, {H_RT}"] + srd_l(sHB, pWS, off_lo=7, size=H_RT, lit_off=H_OFF)
    L += [f"s_mul_i32 s7, {s(sCT)}, {WT_CT}"] + srd_l(sW2, pWS, off_lo=7, size=54*5120, lit_off=WT_OFF)
    L += srd_l(sWO, pWS, off_lo=7, size=128*5120, lit_off=WT_OFF + 54*5120)
    L += [f"s_lshl_b32 s7, {s(sRTB)}, 19"] + srd_l(sOB, pWS, off_lo=7, size=O_RT, lit_off=O_OFF)
    L += [f"s_mul_i32 s7, {s(sRTB)}, 81920", f"s_mul_i32 {s(sT)}, {s(sCT)}, 160", f"s_add_u32 s7, s7, {s(sT)}"]
    L += srd_l(sX, pX, off_lo=7, size=f"s_sub_u32 {s(sX+2)}, {2048*1280}, s7")
    L += srd_l(sOUT, pOUT, off_lo=7, size=f"s_sub_u32 {s(sOUT+2)}, {2048*1280}, s7")
    L += ["s_bfe_u32 s7, s2, 0x20003", f"s_add_u32 {s(sPHI)}, s7, s6", f"s_and_b32 {s(sPHI)}, {s(sPHI)}, 3"]
    L += ["s_lshl_b32 s7, s7, 2", "s_add_u32 s7, s7, s4", f"s_lshl_b32 {s(sWH)}, s7, 13", f"s_add_u32 {s(sWH)}, {s(sWH)}, {H_RT - 131072}"]
    L += ["s_lshl_b32 s7, s6, 2", "s_add_u32 s7, s7, s4", f"s_lshl_b32 {s(sWW)}, s7, 13", f"s_add_u32 {s(sWW)}, {s(sWW)}, {54*5120 - 262144}"]
    g.V(2, f"v_lshlrev_b32 {v(vTCH)}, 3, {v(vLN16)}")
    L += ["s_lshl_b32 s7, s7, 5", "s_add_u32 s7, s7, s5", "s_lshl_b32 s7, s7, 7", f"s_add_u32 {s(sF3)}, s7, {F3_OFF}"]
    if OPT["fwarm"]:
        for n_, x in enumerate(line_off(P1 + 4) + [f"v_not_b32 {v(P1+r)}, {s(sTAG + r%2)}" for r in range(4)]): g.V(3 + n_//2, x)
        g.M(103, f"buffer_store_dwordx4 {v(P1,4)}, {v(P1+4)}, {s(sFL,4)}, {s(sF3)} offen sc1")
    k = 16
    for x in L:
        while g.sh[k]: k += 1
        g.S(k, x)
    assert k < 84
    k = 116
    I("s_mul_i32 s7, s4, 20480")
    for n_, x in enumerate(xo_ops(P1 + 8, P1 + 12)): g.V(n_//3, x)
    g.S(k, f"s_mul_i32 s7, s4, 3072")
    for m in range(3):
        g.S(k + 1 + 4*m, f"s_add_u32 m0, s7, {XLDS + 1024*m}")
        g.M(k + 3 + 4*m, f"buffer_load_dwordx4 {v(P1 + 8 + m)}, {s(sX,4)}, 0 offen lds")
    for n in range(30):
        blk, j = divmod(n, 4)
        for r in range(4): g.V(4*n + 8 + r, sexp(j, r))
        g.V(4*n + 11, pcvt(P0, blk, j, 0)); g.V(4*n + 11, pcvt(P0, blk, j, 1))
    g.emit(sc)
    for r in range(4): I(sexp(2, r))
    I(pcvt(P0, 7, 2, 0)); I(pcvt(P0, 7, 2, 1))
    stamp(sc, 3)
    return sc

def period(par, first=False, name=None, loop_end=None, last=False):
    sc = Sec(name); I = sc.I
    Pc, Pn = (P0, P1) if par == 0 else (P1, P0)
    kb = 1 - par; vb = par
    g = Gaps()
    dm = []
    for m in range(8):
        dm.append(kv_dma("V", 1-par, m, f"s_add_u32 {s(sT)}, {s(sKOFF)}, {4096*m}") + (None,))
        if not last: dm.append(kv_dma("K", par, m, f"s_add_u32 {s(sT)}, {s(sKOFF)}, {32768 + 4096*m}") + (None,))
    if last and OPT["prel"]: dm += early_loads(0, 30)
    def put_dma(k):
        if not dm: return
        d = dm.pop(0)
        if d[0]: g.S(k-1, d[0])
        if d[1]: g.S(k, d[1])
        g.M(k, d[2], d[3])
    k0 = sum_group(g, Pc, first)
    soft4(g, k0, Pc, 7, 3)
    for t in range(4): g.M(k0 + [1, 3, 5, 7][t], kread(KF, kb, 0, t))
    for k in (5, 9, 13): put_dma(k0 + k)
    g.S(k0 + 15, "s_waitcnt lgkmcnt(0)")
    if last:
        g.V(k0 + 8, f"v_readfirstlane_b32 s3, {v(vPOLL)}")
        g.S(k0 + 10, "s_cmp_lt_u32 s3, 256"); g.S(k0 + 10, "s_cbranch_scc1 L_s2"); g.S(k0 + 10, "L_s2_back:")
    for blk in range(8):
        k0 = qk_group(g, KF)
        if blk > 0: soft4(g, k0, Pn, blk-1, 3)
        soft4(g, k0 + 8, Pn, blk, 0)
        gp = [1, 1, 3, 5, 5, 7, 9, 9]
        for n in range(8): g.M(k0 + gp[n], vread(VF, vb, blk, n//2, n%2))
        for k in ((13,) if not last else (11, 13)): put_dma(k0 + k)
        g.S(k0 + 15, "s_waitcnt lgkmcnt(4)")
        k0 = pv_group(g, blk, VF, Pc, first)
        g.S(k0 + 1, "s_waitcnt lgkmcnt(0)")
        soft4(g, k0, Pn, blk, 1)
        soft4(g, k0 + 8, Pn, blk, 2)
        if blk < 7:
            for t in range(4): g.M(k0 + [1, 3, 5, 7][t], kread(KF, kb, blk+1, t))
            for k in ((9, 13) if not last else (5, 9, 13)): put_dma(k0 + k)
            if blk == 4 and loop_end: g.M(k0 + 13, f"buffer_load_dword {v(vPOLL)}, off, {s(sDBG,4)}, 0 sc1")
            if blk == 4 and not first and not last and OPT["warm"]:
                job = (sHB, sWH) if par == 1 else (sW2, sWW)
                g.S(k0 + 4, f"s_cmp_eq_u32 {s(sCNT)}, 1")
                g.S(k0 + 5, f"s_cselect_b32 {s(sT2)}, {s(job[1])}, 0x40000000")
                g.M(k0 + 9, f"buffer_load_dword {v(vTCD)}, {v(vTCH)}, {s(job[0],4)}, {s(sT2)} offen")
            g.S(k0 + 15, "s_waitcnt lgkmcnt(0)")
        else:
            g.S(k0 + 9, "s_waitcnt vmcnt(0)" if not last else f"s_waitcnt vmcnt({30 if OPT['prel'] else 0})")
            g.S(k0 + 9, "s_barrier")
            g.S(k0 + 11, f"s_add_u32 {s(sKOFF)}, {s(sKOFF)}, 32768")
            if loop_end:
                g.S(k0 + 13, f"s_sub_u32 {s(sCNT)}, {s(sCNT)}, 1")
                g.S(k0 + 14, f"s_cmp_lg_u32 {s(sCNT)}, 0")
    assert not dm
    g.emit(sc)
    if loop_end: I(f"s_cbranch_scc1 {loop_end}")
    return sc

NST = 7; NS_B = 46
RF = [a(180 + 4*i, 4) for i in range(18)] + [v(P1 + 4*i, 4) for i in range(16)] + [v(P0 + 4*i, 4) for i in range(11)] \
     + [v(QF + 4*i, 4) for i in range(16)] + [v(NEGM + 4*i, 4) for i in range(2)]
def frag(n, f): return RF[9*(n % NST) + f]
ORDER = [0, 1, 5, 2, 6, 3, 7, 4, 8]
LSLOT = [4096*i for i in range(8)] + [135168 + 4096*i for i in range(4)] + [32768 + 4096*i for i in range(15)]
def early_loads(i0, i1):
    out = []
    for i in range(i0, i1):
        n, m = divmod(i, 9); f = ORDER[m]
        so = f"s_mov_b32 {s(sT)}, {20480*n + 1024*f if f < 5 else 16384*n}"
        src = f"{v(vA)}, {s(sW2,4)}, {s(sT)} offen{LD}" if f < 5 else f"{v(vB+f-5)}, {s(sHB,4)}, {s(sT)} offen{LD}"
        if n < 2: out.append((None, so, f"buffer_load_dwordx4 {frag(n, f)}, {src}", f"S{n}"))
        else: out.append((f"s_add_u32 m0, {s(sW1024)}, {LSLOT[i-18]}", so, f"buffer_load_dwordx4 {src} lds", f"S{n}"))
    return out
def bloads(n):
    i = n if n < 14 else n - 14
    sb, sa = (sHB, sW2) if n < 14 else (sOB, sWO)
    L = []
    for f in (ORDER if n < NS_B - 1 else [0, 1, 6, 2, 3, 4, 7, 8, 5]):
        if f < 5: L.append(f"buffer_load_dwordx4 {frag(n, f)}, {v(vA + f//4)}, {s(sa,4)}, {s(sA)} offen offset:{1024*(f%4)}{LD}")
        else: L.append(f"buffer_load_dwordx4 {frag(n, f)}, {v(vB+f-5)}, {s(sb,4)}, {s(sB)} offen{LD}")
    if n < 14 or not OPT["lead"]:
        return [], [f"s_mov_b32 {s(sA)}, {20480*i}", f"s_mov_b32 {s(sB)}, {16384*i}"], L
    if i == 0: pre = [f"s_mov_b32 {s(sN)}, {s(sPHI)}"]
    elif i <= 28: pre = [f"s_cmp_eq_u32 {s(sPHI)}, {(i-1) % 4}", f"s_cselect_b32 {s(sN)}, {i+3}, {i-1}"]
    else: pre = [f"s_cmp_le_u32 {s(sPHI)}, {i-29}", f"s_cselect_b32 {s(sN)}, {i}, {i-1}"]
    return pre, [f"s_mul_i32 {s(sA)}, {s(sN)}, 20480", f"s_lshl_b32 {s(sB)}, {s(sN)}, 14"], L
def put_stage(g, n, k0, k1):
    pre0, pre, L = bloads(n)
    pos = [k0 + (m*(k1 - k0))//9 for m in range(9)]
    for x in pre0: g.S(pos[0] - 4, x)
    g.S(pos[0], pre[0]); g.S(pos[1], pre[1])
    for m, (p_, t) in enumerate(zip(pos, L)): g.M(p_, t, f"S{n}" if (n < NS_B - 1 or m < 6) else f"S{n}_{m}")

def final():
    sc = Sec("final"); I = sc.I
    stamp(sc, 4)
    g = Gaps()
    Pc = P1; vb = 1
    k0 = sum_group(g, Pc, False)
    soft4(g, k0, Pc, 7, 3)
    gp = [1, 1, 3, 5, 5, 7, 9, 9]
    for n in range(8): g.M(k0 + gp[n], vread(VF, vb, 0, n//2, n%2))
    g.S(k0 + 15, "s_waitcnt lgkmcnt(0)")
    ks = []
    for e in range(8):
        vf = VF if e % 2 == 0 else KF
        k0 = pv_group(g, e, vf, Pc, False); ks.append(k0)
        if e < 7:
            for n in range(8): g.M(k0 + 1 + n, vread(KF if e % 2 == 0 else VF, vb, e+1, n//2, n%2))
            g.S(k0 + 15, "s_waitcnt lgkmcnt(0)")
    el = early_loads(30 if OPT["prel"] else 0, 45)
    span = (ks[2] + 8) if OPT["prel"] else ks[4]
    for i_, d in enumerate(el):
        k = 2 + (i_*(span - 2))//len(el)
        if d[0]: g.S(k - 1, d[0])
        g.S(k, d[1]); g.M(k, d[2], d[3])
    g.S(ks[3] + 10, "s_waitcnt @vm:S2")
    if OPT["fin56"]:
        put_stage(g, 5, ks[4], ks[6]); put_stage(g, 6, ks[6], ks[7] + 16)
    RI = vTMP
    ops = []
    for j in range(4): ops.append(f"v_accvgpr_read_b32 {v(SS+j)}, {a(LA + 4*j)}")
    for j in range(4): ops.append(f"v_rcp_f32 {v(RI+j)}, {v(SS+j)}")
    ops.append(f"v_add_f32 {v(SS+5)}, {v(SS)}, {v(SS+1)}")
    ops.append(f"v_add_f32 {v(SS+5)}, {v(SS+5)}, {v(SS+2)}")
    ops.append(f"v_add_f32 {v(SS+5)}, {v(SS+5)}, {v(SS+3)}")
    ops.append(f"v_cmp_ngt_f32 vcc, {f32(2.0**64)}, {v(SS+5)}")
    ops.append(f"v_mov_b32 {v(SS+4)}, {FLAGS}")
    k = g.fill(ops, ks[0] + 4, force_by=ks[1] + 6)
    k = ks[1] + 7
    g.S(k, "s_cmp_lg_u64 vcc, 0"); g.S(k, "s_cselect_b32 s3, 1, 0"); g.S(k+1, "s_lshl_b32 s7, s4, 2")
    g.V(k+2, f"v_mov_b32 {v(SS+6)}, s3"); g.V(k+2, f"v_add_u32 {v(SS+7)}, s7, {v(SS+4)}")
    g.M(k+4, f"ds_write_b32 {v(SS+7)}, {v(SS+6)}")
    g.S(ks[2], "s_barrier")
    g.M(ks[2] + 9, f"ds_read_b128 {v(SS+8,4)}, {v(SS+4)}")
    k = ks[3]
    g.V(k, f"v_or3_b32 {v(SS+8)}, {v(SS+8)}, {v(SS+9)}, {v(SS+10)}"); g.V(k, f"v_or_b32 {v(SS+8)}, {v(SS+8)}, {v(SS+11)}")
    g.V(k+1, f"v_readfirstlane_b32 s3, {v(SS+8)}")
    g.S(k+3, f"s_andn2_b32 s3, s3, {s(sRETRY)}"); g.S(k+3, "s_cbranch_scc1 L_a_truemax")
    def oconv(st):
        ops = []
        for j in range(4):
            b = P0 + 12*j
            src = [OA + 16*(2*st + hb) + 4*j + r for hb in range(2) for r in range(4)]
            for e in range(8): ops.append(f"v_accvgpr_read_b32 {v(b+e)}, {a(src[e])}")
            for e in range(8): ops.append(f"v_mul_f32 {v(b+e)}, {v(b+e)}, {v(RI+j)}")
            for e in range(4): ops.append(f"v_cvt_pk_bf16_f32 {v(b+8+e)}, {v(b+2*e)}, {v(b+2*e+1)}")
            so = "0" if st == 0 else s(sC4096 + st - 1)
            ops.append(f"buffer_store_dwordx4 {v(b+8,4)}, {v(vOOFF)}, {s(sO,4)}, {so} offen offset:{1024*j} sc1")
        return ops
    for st in range(3): g.spread(oconv(st), ks[2*st+2] + 4, ks[2*st+3] + 16)
    g.emit(sc)
    for o in oconv(3): I(o, "OST" if "store" in o else None)
    stamp(sc, 5)
    return sc

def outphase():
    sc = Sec("outp"); I = sc.I
    vXD, vWR, vRD, vF3 = vKA, vKA + 1, vVA, vVA + 1
    vXL = vVA + 7; vXO = vTMP
    vPL = vVA + 2
    vTG = P0 + 56; vTO = vVA + 6
    XR = P0 + 44
    GA = 160; T = SS
    def accr(set_, nbi, jj): return 80*set_ + 20*jj + 4*nbi
    g = Gaps(); kst = []
    for n in range(NS_B):
        set_ = 0 if n < 14 else 1
        k0 = len(g.m); kst.append(k0)
        for jj in ((0, 1, 2, 3) if n < NS_B - 1 else (1, 2, 3, 0)):
            for nbi in range(5):
                d = a(accr(set_, nbi, jj), 4)
                g.add(f"{MF} {d}, {frag(n, nbi)}, {frag(n, 5+jj)}, {'0' if n in (0, 14) else d}")
    kst.append(len(g.m))
    slow = [1, 3, 5, 30][:6 - OPT["laend"]]
    n = 1; ip = 7; issue_at = {}
    if not OPT["fin56"]: n = 0; ip = 5; slow = [2, 4, 30][:5 - OPT["laend"]]
    while ip < NS_B:
        span = 2 if n in slow else 1
        put_stage(g, ip, kst[n] + 1, kst[n + span] - 1); issue_at[ip] = n
        ip += 1; n += span
    for n in range(NS_B - 1):
        if n + 1 in (2, 3, 4): g.S(kst[n+1] - 1, "s_waitcnt lgkmcnt(0)")
        else: g.S(kst[n+1] - 1, f"s_waitcnt @vm:S{n+1}")
    for m in (6, 7, 8): g.S(kst[NS_B-1] + 5*(m-5) - 1, f"s_waitcnt @vm:S{NS_B-1}_{m}")
    vLS = vVA + 4
    g.V(0, f"v_add_u32 {v(vLS)}, {s(sW1024)}, {v(vLN16)}"); g.V(0, f"v_add_u32 {v(vLS+1)}, 0x18000, {v(vLS)}")
    for n in (2, 3, 4):
        g.S(kst[n-1], f"s_waitcnt @vm:S{n}")
        for m in range(9):
            o = LSLOT[9*(n-2) + m]
            ad = (v(vLS), o) if o < 65536 else (v(vLS+1), o - 0x18000) if o >= 0x18000 else (v(vLS+3), o - 65536)
            g.M(kst[n-1] + m, f"ds_read_b128 {frag(n, ORDER[m])}, {ad[0]} offset:{ad[1]}")
    g.V(1, f"v_add_u32 {v(vLS+3)}, 0x10000, {v(vLS)}")
    ops = [f"v_and_b32 {v(vF3)}, 0x1f0, {v(vLN16)}", f"v_lshlrev_b32 {v(vF3)}, 3, {v(vF3)}",
           ] + [f"v_mov_b32 {v(vTG+r)}, {s(sTAG + r%2)}" for r in range(4)] + line_off(vTO)
    g.fill(ops, 2, force_by=20)
    k = kst[7]
    g.S(k, "s_mul_i32 s3, s4, 3072"); g.S(k, f"s_add_u32 s3, s3, {XLDS}"); g.S(k, "s_mul_i32 s7, s4, 20480")
    ops = [f"v_add_u32 {v(vXL)}, s3, {v(vLN16)}",
           f"v_bfe_u32 {v(T)}, {v(vLN16)}, 4, 4", f"v_lshrrev_b32 {v(T+1)}, 8, {v(vLN16)}",
           f"v_mul_u32_u24 {v(vXD)}, 160, {v(T)}", f"v_lshl_add_u32 {v(vXD)}, {v(T+1)}, 3, {v(vXD)}", f"v_add_u32 {v(vXD)}, s3, {v(vXD)}"]
    g.fill(ops + xo_ops(vXO, T), k + 1, force_by=kst[9])
    for nbi in range(5): g.M(kst[13] + 2 + 2*nbi, f"ds_read_b64 {v(XR+2*nbi,2)}, {v(vXD)} offset:{32*nbi}")
    k = kst[6]
    g.S(k + 6, "s_mul_i32 s3, s4, 30720"); g.V(k + 6, f"v_add_u32 {v(vRD)}, s3, {v(vLN16)}")
    for jj in (1, 2, 3):
        kk = k + 6 + 2*jj
        g.S(kk, f"s_add_u32 s3, s4, {jj}"); g.S(kk, "s_and_b32 s3, s3, 3"); g.S(kk, "s_mul_i32 s3, s3, 30720"); g.S(kk, f"s_add_u32 s3, s3, {5120*(jj-1)}")
        g.V(kk, f"v_add_u32 {v(vWR+jj-1)}, s3, {v(vLN16)}")
    k = kst[2]
    g.S(k, "s_waitcnt @vm:OST")
    g.M(k, f"buffer_store_dwordx4 {v(vTG,4)}, {v(vTO)}, {s(sFL,4)}, {s(sF3)} offen sc1")
    g.S(kst[5], "s_barrier")
    n14 = issue_at[14]
    k = kst[n14 - 1]
    g.S(k, f"s_lshl_b32 {s(sT)}, {s(sRTB)}, 12"); g.S(k, f"s_add_u32 {s(sT)}, {s(sT)}, {F3_OFF}")
    poll = f"buffer_load_dwordx2 {v(vPL,2)}, {v(vF3)}, {s(sFL,4)}, {s(sT)} offen sc1"
    g.M(k, poll, "PL")
    k = kst[n14]
    g.S(k, "s_waitcnt @vm:PL")
    g.V(k, f"v_cmp_ne_u64 vcc, {s(sTAG,2)}, {v(vPL,2)}"); g.V(k, "s_cbranch_vccnz L_s3"); g.V(k, "L_s3_back:")
    k = kst[n14 + 1]
    for x in (f"s_or_b32 s3, s4, {s(sHH)}", "s_lshl_b32 s3, s3, 20", "s_lshl_b32 s7, s6, 7", "s_add_u32 s3, s3, s7"): g.S(k, x)
    g.M(k, f"buffer_store_dwordx4 {v(vTG,4)}, {v(vTO)}, {s(sFL,4)}, s3 offen sc1")
    def redwrite(set_):
        return [f"ds_write_b128 {v(vWR+jj-1)}, {a(accr(set_, nbi, jj), 4)} offset:{15360*set_ + 1024*nbi}" for jj in (1, 2, 3) for nbi in range(5)]
    for m, t in enumerate(redwrite(0)): g.M(kst[15 + m//8] + 2*(m % 8), t)
    g.S(kst[18], "s_waitcnt lgkmcnt(0)"); g.S(kst[18], "s_barrier")
    for nbi in range(5):
        k0 = kst[19 + nbi]
        for sr in range(3): g.M(k0 + 2*sr, f"ds_read_b128 {v(T + 4 + 4*sr, 4)}, {v(vRD)} offset:{5120*sr + 1024*nbi}")
        g.S(k0 + 10, "s_waitcnt lgkmcnt(0)")
        ops = []
        for r in range(4): ops.append(f"v_accvgpr_read_b32 {v(T+r)}, {a(accr(0, nbi, 0) + r)}")
        for sr in range(3):
            for r in range(4): ops.append(f"v_add_f32 {v(T+r)}, {v(T+r)}, {v(T+4+4*sr+r)}")
        for r in range(4): ops.append(f"v_mul_f32 {v(T+4+r)}, {s(sNL2E)}, {v(T+r)}")
        for r in range(4): ops.append(f"v_exp_f32 {v(T+4+r)}, {v(T+4+r)}")
        for r in range(4): ops.append(f"v_add_f32 {v(T+4+r)}, 1.0, {v(T+4+r)}")
        for r in range(4): ops.append(f"v_rcp_f32 {v(T+4+r)}, {v(T+4+r)}")
        for r in range(4): ops.append(f"v_mul_f32 {v(T+r)}, {v(T+r)}, {v(T+4+r)}")
        for r in range(4): ops.append(f"v_accvgpr_write_b32 {a(GA + 4*nbi + r)}, {v(T+r)}")
        g.spread(ops, k0 + 10, k0 + 20)
    if OPT["stamp"]:
        for idx, n in enumerate((2, 4, 6, 8, 10, 12, 14, 18, 26, 34, 42)):
            tmp = Sec("x"); stamp(tmp, 12 + idx)
            for i_ in tmp.ins: g.V(kst[n] - 2, i_.text)
    I("s_waitcnt @vm:S0")
    FG = P0 + 8; FX = QF; F = P1 + 40
    ops = [f"v_accvgpr_read_b32 {v(FG+i)}, {a(GA + i)}" for i in range(20)]
    g.S(kst[41], "s_mov_b32 s3, 0xffff0000")
    for nbi in range(5):
        for h2 in range(2):
            ops.append(f"v_lshlrev_b32 {v(FX + 4*nbi + 2*h2)}, 16, {v(XR + 2*nbi + h2)}")
            ops.append(f"v_and_b32 {v(FX + 1 + 4*nbi + 2*h2)}, s3, {v(XR + 2*nbi + h2)}")
    g.fill(ops, kst[41] + 1, force_by=kst[44])
    rw = redwrite(1); kl = kst[NS_B - 1]
    for m in range(9): g.M(kl + 11 + m, rw[m])
    g.emit(sc)
    stamp(sc, 6)
    for t in rw[9:]: I(t)
    I("s_waitcnt lgkmcnt(0)")
    I("s_barrier")
    RR = [P1 + 4*i for i in range(9)] + [QF + 36 + 4*i for i in range(6)]
    for nbi in range(5):
        for sr in range(3): I(f"ds_read_b128 {v(RR[3*nbi + sr], 4)}, {v(vRD)} offset:{15360 + 5120*sr + 1024*nbi}", f"R{nbi}")
    for i in range(20): I(f"v_accvgpr_read_b32 {v(F+i)}, {a(accr(1, 0, 0) + i)}")
    for nbi in range(5):
        I(f"s_waitcnt @lg:R{nbi}")
        for sr in range(3):
            for h2 in range(2):
                I(f"v_pk_add_f32 {v(F + 4*nbi + 2*h2, 2)}, {v(F + 4*nbi + 2*h2, 2)}, {v(RR[3*nbi + sr] + 2*h2, 2)}")
        for h2 in range(2):
            I(f"v_pk_fma_f32 {v(F + 4*nbi + 2*h2, 2)}, {v(F + 4*nbi + 2*h2, 2)}, {v(FG + 4*nbi + 2*h2, 2)}, {v(FX + 4*nbi + 2*h2, 2)}")
        for h2 in range(2):
            I(f"v_cvt_pk_bf16_f32 {v(XR + 2*nbi + h2)}, {v(F + 4*nbi + 2*h2)}, {v(F + 4*nbi + 2*h2 + 1)}")
        I(f"ds_write_b64 {v(vXD)}, {v(XR+2*nbi,2)} offset:{32*nbi}")
    F = P1
    for m in range(3): I(f"ds_read_b128 {v(F + 4*m, 4)}, {v(vXL)} offset:{1024*m}", f"Z{m}")
    for m in range(3):
        I(f"s_waitcnt @lg:Z{m}")
        I(f"buffer_store_dwordx4 {v(F + 4*m, 4)}, {v(vXO+m)}, {s(sOUT,4)}, 0 offen")
    if OPT["stamp"]:
        stamp(sc, 8)
        I("s_waitcnt vmcnt(0)")
        stamp(sc, 9)
        srd(sc, sOUT, pWS, size=1024*256, lit_off=ST_OFF)
        I(f"s_lshl_b32 s3, s2, 10")
        I(f"s_lshl_b32 s7, s4, 8")
        I("s_add_u32 s3, s3, s7")
        I(f"v_lshrrev_b32 v251, 2, {v(vLN16)}")
        I(f"buffer_store_dword v255, v251, {s(sOUT,4)}, s3 offen")
    I("L_a_end:")
    I("s_endpgm")
    s2 = Sec("s2"); s2.I("L_s2:")
    spin(s2, "L_s2l", f"buffer_load_dword {v(vPOLL)}, off, {s(sDBG,4)}, 0 sc1",
         lambda ok: [f"v_readfirstlane_b32 s3, {v(vPOLL)}", "s_nop 3", "s_cmp_ge_u32 s3, 256", f"s_cbranch_scc1 {ok}"], back="L_s2_back")
    s3 = Sec("s3"); s3.I("L_s3:")
    if OPT["stamp"]: stamp(s3, 10)
    spin(s3, "L_s3l", poll, lambda ok: [f"v_cmp_ne_u64 vcc, {s(sTAG,2)}, {v(vPL,2)}", f"s_cbranch_vccz {ok}"])
    if OPT["stamp"]: stamp(s3, 11)
    s3.I("s_branch L_s3_back")
    return sc, s2, s3

def truemax():
    s1 = Sec("tm_a"); I = s1.I
    MX = P1
    I("L_a_truemax:")
    I("s_waitcnt vmcnt(0) lgkmcnt(0)")
    I(f"s_mov_b32 {s(sRETRY)}, 1")
    I("s_nop 7")
    for j in range(4): I(f"v_mov_b32 {v(MX+j)}, 0xff800000")
    I(f"s_mov_b32 {s(sKOFF)}, 0")
    s2 = Sec("tm_b"); I = s2.I
    I("L_tm_tile:")
    I("s_barrier")
    for m in range(8):
        for x in kv_dma("K", 0, m, f"s_add_u32 {s(sT)}, {s(sKOFF)}, {4096*m}"): I(x)
    I("s_waitcnt vmcnt(0)")
    I("s_barrier")
    for t in range(4): I(f"v_mov_b32 {v(P0+t)}, {v(vKA+t)}")
    I(f"s_mov_b32 {s(sCNT)}, 8")
    s3 = Sec("tm_c"); I = s3.I
    I("L_tm_blk:")
    for t in range(4): I(f"ds_read_b128 {a(KF + 4*t, 4)}, {v(P0+t)}")
    for t in range(4): I(f"v_add_u32 {v(P0+t)}, 4096, {v(P0+t)}")
    I("s_waitcnt lgkmcnt(0)")
    g = Gaps(); qk_group(g, KF, czero=True); g.emit(s3)
    I("s_nop 7")
    for j in range(4):
        I(f"v_max3_f32 {v(MX+j)}, {v(MX+j)}, {v(SS+4*j)}, {v(SS+4*j+1)}")
        I(f"v_max3_f32 {v(MX+j)}, {v(MX+j)}, {v(SS+4*j+2)}, {v(SS+4*j+3)}")
    I(f"s_sub_u32 {s(sCNT)}, {s(sCNT)}, 1")
    I(f"s_cmp_lg_u32 {s(sCNT)}, 0")
    I("s_cbranch_scc1 L_tm_blk")
    s4 = Sec("tm_d"); I = s4.I
    I(f"s_add_u32 {s(sKOFF)}, {s(sKOFF)}, 32768")
    I(f"s_cmp_lt_u32 {s(sKOFF)}, 524288")
    I("s_cbranch_scc1 L_tm_tile")
    s5 = Sec("tm_e"); I = s5.I
    I("s_barrier")
    for bf in range(2):
        for m in range(8):
            for x in kv_dma("K", bf, m, f"s_mov_b32 {s(sT)}, {32768*bf + 4096*m}"): I(x)
    for m in range(8):
        for x in kv_dma("V", 0, m, f"s_mov_b32 {s(sT)}, {4096*m}"): I(x)
    rowmax_finish(s5, MX)
    I("s_waitcnt vmcnt(0)")
    I("s_barrier")
    for t in range(4): I(kread(KF, 0, 0, t))
    I("s_waitcnt lgkmcnt(0)")
    I("s_branch L_a_pre")
    return [s1, s2, s3, s4, s5]

def upto(sec, text):
    x = Sec(sec.name + "_cut")
    for i in sec.ins:
        x.ins.append(i)
        if text in i.text: return x
    raise ValueError(text)

def gen_main():
    st = a_setup()
    st.I(f"s_cmp_ge_u32 {s(sHH)}, 27")
    st.I("s_cbranch_scc1 L_a_noffn")
    g1 = gemm(True)
    si = standin(); pre = prephase()
    p0 = period(0, first=True, name="p0"); p0.I("s_branch L_a_odd")
    lp = Sec("lp"); lp.I(".p2align 3"); lp.I("L_a_loop:")
    p2 = period(0, name="p2")
    lo = Sec("lo"); lo.I("L_a_odd:")
    p1 = period(1, name="p1", loop_end="L_a_loop")
    pl = period(0, name="pl", last=True)
    fin = final()
    op, s2, s3 = outphase()
    tm = truemax()
    nf = Sec("nf"); nf.I("L_a_noffn:")
    g2 = gemm(False); tr = transposer(); tr.I("s_branch L_a_attn")
    resolve_waits([st, g1]); resolve_waits([st, g2, tr]); resolve_waits([pl, fin, op])
    order = [st, g1, si, pre, p0, lp, p2, lo, p1, pl, fin, op, s2, s3, nf, g2, tr] + tm
    main = [si, pre, p0, p1, p2, p1, p2, p1, pl, fin, op]
    traces = [[st, g1] + main, [st, g2, tr] + main,
              [pl, upto(fin, "L_a_truemax"), tm[0], tm[1], tm[2], tm[2], tm[3], tm[1], tm[2], tm[3], tm[4], pre, p0],
              [p1, upto(pl, "scc1 L_s2"), s2], [pl, fin, upto(op, "vccnz L_s3"), s3]]
    for x in (g1, g2, si, pre, p0, p1, p2, pl, fin, op): print(f"  est {x.name}: cycles={est_cycles(x)}", file=sys.stderr)
    return order, traces, kdesc(KNAME, 512, 256, 102)

def main():
    ref = open(f"cdna_kernels/{NAME}.s.ref").read().split("\n")
    hdr = [l for l in ref if l.startswith(";") and "@launch" not in l and "Override launch" not in l and "grid=ceil" not in l]
    out = hdr[:]
    if OPT["lnfuse"]:
        out.append("; @launch grid=(256,1,1) block=(256,1,1) lds=163840")
        ks = [(KNAME, gen_main)]
    else:
        out.append("; @launch kernel=ln_kernel grid=(256,1,1) block=(128,1,1) lds=0")
        out.append("; @launch kernel=attn_kernel grid=(256,1,1) block=(256,1,1) lds=163840")
        ks = [("ln_kernel", gen_ln), (KNAME, gen_main)]
    out.append('.amdgcn_target "amdgcn-amd-amdhsa--gfx950"')
    out.append(".text")
    kds = []; nerr = 0
    for nm, fn in ks:
        secs, traces, kd = fn()
        out.append(f".globl {nm}\n.p2align 8\n.type {nm},@function")
        for sc in secs: out.append(sc.text())
        kds.append(kd)
        for n, tr in enumerate(traces):
            errs = check_trace(tr, f"{nm[-12:]}/{n}")
            for e in errs[:20]: print(e, file=sys.stderr)
            nerr += len(errs)
    out.append("L_code_end:")
    out.append('.section .rodata,"a"')
    out += kds
    open(sys.argv[1], "w").write("\n".join(out) + "\n")
    print(f"hazard problems: {nerr}", file=sys.stderr)
main()
```
